```python
import torch

def _softmax(x, axis=-1):
    return torch.softmax(x, dim=axis)
def _gelu(x):
    return torch.nn.functional.gelu(x, approximate="tanh")
def _silu(x):
    return torch.nn.functional.silu(x)
def _sigmoid(x):
    return torch.sigmoid(x)
def _layernorm(x, axis=-1, eps=1e-5):
    m = x.mean(dim=axis, keepdim=True)
    v = x.var(dim=axis, keepdim=True, unbiased=False)
    return (x - m) / torch.sqrt(v + eps)
def _scatter_add(tgt, idx, src, axis=0):
    return tgt.clone().index_add_(axis, idx, src)
def _segment_sum(src, seg, n):
    out = torch.zeros((n,) + src.shape[1:], dtype=src.dtype)
    return out.index_add_(0, seg, src)
def _pad(x, pw):
    flat = tuple(v for pair in reversed(pw) for v in pair)
    return torch.nn.functional.pad(x, flat)

kernel_name = 'concat_heads__compressed_kv_cla__mha_block_cached__decode'

def setup_inputs():

    _w = (lambda a: (lambda t: t.to(torch.bfloat16) if t.is_floating_point() else t)(torch.as_tensor(a)))
    def _A_setup():
        B, H, Sq, Sk, D, M = 2, 32, 1, 8192, 128, 512
        Dc = 4 * D
        return {
            "x": _w((lambda *s: torch.randn(*s, dtype=torch.bfloat16) * 3.2)(B, Sq, M)),
            "c_kv": _w((lambda *s: torch.randn(*s, dtype=torch.bfloat16) * 0.1)(B, Sk, Dc)),
            "w_q": _w((lambda *s: torch.randn(*s, dtype=torch.bfloat16) * 6.4)(M, H, D) * (M ** -0.5)),
            "w_uk": _w((lambda *s: torch.randn(*s, dtype=torch.bfloat16) * 6.4)(Dc, H, D) * (Dc ** -0.5)),
            "w_uv": _w((lambda *s: torch.randn(*s, dtype=torch.bfloat16) * 0.1)(Dc, H, D) * (Dc ** -0.5)),
            "w_o": _w((lambda *s: torch.randn(*s, dtype=torch.bfloat16) * 0.1)(H, D, M) * ((H * D) ** -0.5)),
        }
    _A_in = _A_setup()

    def _B_setup():
        B, Sq, D = 2, 1, 512
        H, Sk, Dh = 32, 8192, 128
        return {
            "x": _w((lambda *s: torch.randn(*s, dtype=torch.bfloat16) * 1.6)(B, Sq, D)),
            "k_cache": _w((lambda *s: torch.randn(*s, dtype=torch.bfloat16) * 1.6)(B, H, Sk, Dh)),
            "v_cache": _w((lambda *s: torch.randn(*s, dtype=torch.bfloat16) * 0.05)(B, H, Sk, Dh)),
            "wq": _w((lambda *s: torch.randn(*s, dtype=torch.bfloat16) * 1.6)(D, H * Dh) * (D ** -0.5)),
            "wo": _w((lambda *s: torch.randn(*s, dtype=torch.bfloat16) * 0.05)(H * Dh, D) * ((H * Dh) ** -0.5)),
        }
    _B_in = _B_setup()

    return {
        "A_x": _A_in["x"],
        "A_c_kv": _A_in["c_kv"],
        "A_w_q": _A_in["w_q"],
        "A_w_uk": _A_in["w_uk"],
        "A_w_uv": _A_in["w_uv"],
        "A_w_o": _A_in["w_o"],
        "B_x": _B_in["x"],
        "B_k_cache": _B_in["k_cache"],
        "B_v_cache": _B_in["v_cache"],
        "B_wq": _B_in["wq"],
        "B_wo": _B_in["wo"],
    }

def reference(A_x, A_c_kv, A_w_q, A_w_uk, A_w_uv, A_w_o, B_x, B_k_cache, B_v_cache, B_wq, B_wo):
    def _A_ref(x, c_kv, w_q, w_uk, w_uv, w_o):
        B, Sq, M = x.shape[0], x.shape[1], x.shape[2]
        Sk = c_kv.shape[1]
        H, D = w_q.shape[1], w_q.shape[2]
        q = torch.einsum("bqm,mhd->bhqd", x, w_q)
        k = torch.einsum("bkc,chd->bhkd", c_kv, w_uk)
        v = torch.einsum("bkc,chd->bhkd", c_kv, w_uv)
        scores = torch.einsum("bhqd,bhkd->bhqk", q, k) * (D ** -0.5)
        off = Sk - Sq
        qi = torch.arange(Sq)[:, None]
        kj = torch.arange(Sk)[None, :]
        cmask = kj <= (qi + off)
        scores = torch.where(cmask[None, None], scores, -1e9)
        p = _softmax(scores, axis=-1)
        ctx = torch.einsum("bhqk,bhkd->bhqd", p, v)
        return torch.einsum("bhqd,hdm->bqm", ctx, w_o)

    def _B_ref(x, k_cache, v_cache, wq, wo):
        B, Sq, D = x.shape
        H, Dh = 32, 128
        q = (lambda x, *d: x.permute(*d))((x @ wq).reshape(B, Sq, H, Dh), 0, 2, 1, 3)
        scores = torch.einsum("bhqd,bhkd->bhqk", q, k_cache) * (Dh ** -0.5)
        p = _softmax(scores, axis=-1)
        o = torch.einsum("bhqk,bhkd->bhqd", p, v_cache)
        return (lambda x, *d: x.permute(*d))(o, 0, 2, 1, 3).reshape(B, Sq, H * Dh) @ wo

    a = _A_ref(A_x, A_c_kv, A_w_q, A_w_uk, A_w_uv, A_w_o)
    b = _B_ref(B_x, B_k_cache, B_v_cache, B_wq, B_wo)
    return torch.concatenate([a, b], axis=-1)
```

```python
import struct
import sys

NAME = "concat_heads__compressed_kv_cla__mha_block_cached__decode"
OUT = f"cdna_kernels/{NAME}.s"

HEADER = """; Kernarg layout for this problem (112 bytes, ptrs only, base s[0:1]):
"""


def f32bits(x):
    return struct.unpack("<I", struct.pack("<f", x))[0]


import math
CSCALE = (128 ** -0.5) * math.log2(math.e)

NSA = 16
WS_QP = 0
WS_APART = 0x10000
WS_ASTAT = WS_APART + 2 * NSA * 32 * 512 * 4
WS_YA = WS_ASTAT + 0x10000
WS_YB = WS_YA + 32 * 2 * 512 * 4
WS_BSTAT = WS_YB + 2 * 32 * 4 * 512 * 4
WS_END = WS_BSTAT + 0x10000

NA_WG = 2 * NSA
NB_WG = 256


class Asm:
    def __init__(self):
        self.lines = []
        self.uid = 0

    def __call__(self, s):
        for ln in s.strip("\n").split("\n"):
            ln = ln.strip()
            if ln:
                self.lines.append("    " + ln)

    def label(self, l):
        self.lines.append(l + ":")

    def new(self, base):
        self.uid += 1
        return f"L_{base}_{self.uid}"

    def raw(self, s):
        self.lines.append(s)

    def text(self):
        return "\n".join(self.lines) + "\n"


def vr(a, n):
    return f"v[{a}:{a + n - 1}]"


def sr(a, n):
    return f"s[{a}:{a + n - 1}]"


P_AX, P_CKV, P_AWQ, P_WUK, P_WUV, P_AWO, P_BX, P_BK = 16, 18, 20, 22, 24, 26, 28, 30
P_BV, P_BWQ, P_BWO, P_OUT = 32, 34, 36, 38
P_DBG, P_WS = 40, 42
SRD0, SRD1, SRD2, SRD3, SRD4 = 44, 48, 52, 56, 60
S_WAVE = 64
S_C = 65
S_T0, S_T1, S_T2, S_T3, S_T4, S_T5 = 66, 67, 68, 69, 70, 71
S_H, S_B, S_Q = 72, 73, 74
S_LOOP = 75
S_OFF = 76
S_SAVE = 78
S_R0, S_R1, S_R2, S_R3 = 80, 81, 82, 83

V_TID = 0
V_LANE = 1
V_L15 = 2
V_G = 3
V_MASK = 4
V_T0, V_T1, V_T2, V_T3 = 8, 9, 10, 11


def load_kernargs(a):
    a(f"""
    s_load_dwordx16 {sr(16, 16)}, s[0:1], 0
    s_load_dwordx8 {sr(32, 8)}, s[0:1], 64
    s_load_dwordx4 {sr(40, 4)}, s[0:1], 96
    """)


def lane_setup(a):
    a(f"""
    v_and_b32 v{V_LANE}, 63, v{V_TID}
    v_lshrrev_b32 v{V_T0}, 6, v{V_TID}
    v_and_b32 v{V_L15}, 15, v{V_LANE}
    v_readfirstlane_b32 s{S_WAVE}, v{V_T0}
    v_lshrrev_b32 v{V_G}, 4, v{V_LANE}
    s_mov_b32 s{S_C}, {f32bits(CSCALE):#x}
    """)


def make_masks(a):
    a(f"""
    v_and_b32 v{V_T0}, 7, v{V_LANE}
    v_lshrrev_b32 v{V_T1}, 1, v{V_T0}
    v_and_b32 v{V_T0}, 1, v{V_T0}
    v_lshlrev_b32 v{V_T0}, 4, v{V_T0}
    v_mov_b32 v{V_T2}, 0xffff
    v_lshlrev_b32 v{V_T2}, v{V_T0}, v{V_T2}
    """)
    for j in range(4):
        a(f"""
        v_cmp_eq_u32 vcc, {j}, v{V_T1}
        s_nop 1
        v_cndmask_b32 v{V_MASK + j}, 0, v{V_T2}, vcc
        """)


def make_srd(a, srd, ptr, off_sgpr, nbytes):
    if off_sgpr is None:
        a(f"s_mov_b32 s{srd}, s{ptr}\ns_mov_b32 s{srd + 1}, s{ptr + 1}")
    else:
        a(f"s_add_u32 s{srd}, s{ptr}, s{off_sgpr}\ns_addc_u32 s{srd + 1}, s{ptr + 1}, 0")
    a(f"s_mov_b32 s{srd + 2}, {nbytes:#x}\ns_mov_b32 s{srd + 3}, 0x00020000")


def make_srd_imm(a, srd, ptr, off, nbytes):
    a(f"s_add_u32 s{srd}, s{ptr}, {off:#x}\ns_addc_u32 s{srd + 1}, s{ptr + 1}, 0")
    a(f"s_mov_b32 s{srd + 2}, {nbytes:#x}\ns_mov_b32 s{srd + 3}, 0x00020000")


def delta_mfma(a, xregs, i, data, acc, tmp, first=False):
    sel = S_R0 if (i & 1) == 0 else S_R1
    a(f"v_perm_b32 v{tmp + 4}, v{xregs + (i >> 1)}, v{xregs + (i >> 1)}, s{sel}")
    for j in range(4):
        a(f"v_and_b32 v{tmp + j}, v{tmp + 4}, v{V_MASK + j}")
    a("s_nop 1")
    c = "0" if first else vr(acc, 4)
    a(f"v_mfma_f32_16x16x32_bf16 {vr(acc, 4)}, {vr(tmp, 4)}, {vr(data, 4)}, {c}")


def perm_consts(a):
    a(f"s_mov_b32 s{S_R0}, 0x01000100\ns_mov_b32 s{S_R1}, 0x03020302")


L_PART = 0
L_BF = 8192
L_BF2 = 10240
L_STAT = 11264
L_YP = 12288
L_END_SMALL = 20480


def gemv512_phase(a, srd_w, xsrc, wbuf, xregs, acc, tmp, issue_extra=None):
    a(f"""
    v_lshrrev_b32 v{V_T0}, 3, v{V_L15}
    v_lshlrev_b32 v{V_T0}, 10, v{V_T0}
    v_lshlrev_b32 v{V_T1}, 5, v{V_G}
    v_add_u32 v{V_T0}, v{V_T0}, v{V_T1}
    s_lshl_b32 s{S_T0}, s{S_WAVE}, 7
    v_add_u32 v{V_T0}, s{S_T0}, v{V_T0}
    """)
    if xsrc[0] == 'global':
        a(f"""
        buffer_load_dwordx4 {vr(xregs, 4)}, v{V_T0}, {sr(xsrc[1], 4)}, 0 offen
        buffer_load_dwordx4 {vr(xregs + 4, 4)}, v{V_T0}, {sr(xsrc[1], 4)}, 0 offen offset:16
        """)
    else:
        a(f"""
        ds_read_b128 {vr(xregs, 4)}, v{V_T0} offset:{xsrc[1]}
        ds_read_b128 {vr(xregs + 4, 4)}, v{V_T0} offset:{xsrc[1] + 16}
        """)
    a(f"""
    v_lshlrev_b32 v{V_T1}, 17, v{V_G}
    v_lshlrev_b32 v{V_T2}, 4, v{V_L15}
    v_add_u32 v{V_T1}, v{V_T1}, v{V_T2}
    s_lshl_b32 s{S_T0}, s{S_WAVE}, 19
    """)
    for i in range(16):
        a(f"buffer_load_dwordx4 {vr(wbuf[i], 4)}, v{V_T1}, {sr(srd_w, 4)}, s{S_T0} offen")
        if i != 15:
            a(f"s_add_u32 s{S_T0}, s{S_T0}, 8192")
    nextra = 0
    if issue_extra is not None:
        nextra = issue_extra()
    if xsrc[0] != 'global':
        a("s_waitcnt lgkmcnt(0)")
    for i in range(16):
        a(f"s_waitcnt vmcnt({15 - i + nextra})")
        delta_mfma(a, xregs, i, wbuf[i], acc, tmp, first=(i == 0))
    a(f"""
    v_lshrrev_b32 v{V_T0}, 1, v{V_G}
    v_lshlrev_b32 v{V_T0}, 9, v{V_T0}
    v_lshlrev_b32 v{V_T1}, 5, v{V_L15}
    v_add_u32 v{V_T0}, v{V_T0}, v{V_T1}
    v_and_b32 v{V_T1}, 1, v{V_G}
    v_lshlrev_b32 v{V_T1}, 4, v{V_T1}
    v_add_u32 v{V_T0}, v{V_T0}, v{V_T1}
    s_lshl_b32 s{S_T0}, s{S_WAVE}, 10
    v_add_u32 v{V_T0}, s{S_T0}, v{V_T0}
    s_nop 7
    ds_write_b128 v{V_T0}, {vr(acc, 4)} offset:{L_PART}
    s_waitcnt lgkmcnt(0)
    s_barrier
    """)
    a(f"""
    v_and_b32 v{V_T0}, 255, v{V_TID}
    v_lshlrev_b32 v{V_T1}, 2, v{V_T0}
    """)
    for w in range(8):
        a(f"ds_read_b32 v{xregs + w}, v{V_T1} offset:{L_PART + w * 1024}")
    a("s_waitcnt lgkmcnt(0)")
    for w in range(1, 8):
        a(f"v_add_f32 v{xregs}, v{xregs}, v{xregs + w}")
    a(f"""
    v_cvt_pk_bf16_f32 v{xregs}, v{xregs}, v{xregs}
    v_lshlrev_b32 v{V_T1}, 1, v{V_T0}
    ds_write_b16 v{V_T1}, v{xregs} offset:{L_BF2}
    s_waitcnt lgkmcnt(0)
    s_barrier
    """)


def proj_phase(a, srd_w, xlds, two_b, wbuf, xregs, acc, tmp):
    a(f"""
    s_and_b32 s{S_T1}, s{S_WAVE}, 3
    s_lshr_b32 s{S_T2}, s{S_WAVE}, 2
    v_lshlrev_b32 v{V_T0}, 5, v{V_G}
    s_lshl_b32 s{S_T0}, s{S_T2}, 7
    v_add_u32 v{V_T0}, s{S_T0}, v{V_T0}
    """)
    if two_b:
        a(f"""
        v_lshrrev_b32 v{V_T1}, 3, v{V_L15}
        v_lshlrev_b32 v{V_T1}, 8, v{V_T1}
        v_add_u32 v{V_T0}, v{V_T0}, v{V_T1}
        """)
    a(f"""
    ds_read_b128 {vr(xregs, 4)}, v{V_T0} offset:{xlds}
    ds_read_b128 {vr(xregs + 4, 4)}, v{V_T0} offset:{xlds + 16}
    v_lshlrev_b32 v{V_T1}, 14, v{V_G}
    v_lshlrev_b32 v{V_T2}, 4, v{V_L15}
    v_add_u32 v{V_T1}, v{V_T1}, v{V_T2}
    s_lshl_b32 s{S_T0}, s{S_T2}, 16
    s_lshl_b32 s{S_T3}, s{S_T1}, 8
    s_add_u32 s{S_T0}, s{S_T0}, s{S_T3}
    """)
    for i in range(16):
        a(f"buffer_load_dwordx4 {vr(wbuf[i], 4)}, v{V_T1}, {sr(srd_w, 4)}, s{S_T0} offen offset:{(i & 3) * 1024}")
        if (i & 3) == 3 and i != 15:
            a(f"s_add_u32 s{S_T0}, s{S_T0}, 4096")
    a("s_waitcnt lgkmcnt(0)")
    for i in range(16):
        a(f"s_waitcnt vmcnt({15 - i})")
        delta_mfma(a, xregs, i, wbuf[i], acc, tmp, first=(i == 0))
    a(f"""
    v_lshrrev_b32 v{V_T0}, 1, v{V_G}
    v_lshlrev_b32 v{V_T0}, 11, v{V_T0}
    v_lshlrev_b32 v{V_T1}, 5, v{V_L15}
    v_add_u32 v{V_T0}, v{V_T0}, v{V_T1}
    v_and_b32 v{V_T1}, 1, v{V_G}
    v_lshlrev_b32 v{V_T1}, 4, v{V_T1}
    v_add_u32 v{V_T0}, v{V_T0}, v{V_T1}
    s_lshl_b32 s{S_T0}, s{S_T2}, 12
    s_lshl_b32 s{S_T3}, s{S_T1}, 9
    s_add_u32 s{S_T0}, s{S_T0}, s{S_T3}
    v_add_u32 v{V_T0}, s{S_T0}, v{V_T0}
    s_nop 7
    ds_write_b128 v{V_T0}, {vr(acc, 4)} offset:{L_YP}
    s_waitcnt lgkmcnt(0)
    s_barrier
    """)


def gen_prepA(a):
    a.raw(".p2align 8")
    a.label("prepa_kernel")
    a("s_cmp_ge_u32 s2, 32\ns_cbranch_scc1 L_prepa_end")
    load_kernargs(a)
    lane_setup(a)
    make_masks(a)
    perm_consts(a)
    a("s_waitcnt lgkmcnt(0)")
    a(f"s_lshl_b32 s{S_OFF}, s2, 8")
    make_srd(a, SRD0, P_AX, None, 2048)
    make_srd(a, SRD1, P_AWQ, S_OFF, 0)
    a(f"s_sub_u32 s{SRD1 + 2}, {512 * 8192}, s{S_OFF}")
    make_srd(a, SRD2, P_WUK, S_OFF, 0)
    a(f"s_sub_u32 s{SRD2 + 2}, {512 * 8192}, s{S_OFF}")
    make_srd_imm(a, SRD3, P_WS, WS_QP, 65536)
    wbuf = [64 + 4 * i for i in range(16)]
    gemv512_phase(a, SRD1, ('global', SRD0), wbuf, 16, 24, 28)
    QF = 32
    a(f"""
    v_and_b32 v{V_T0}, 1, v{V_L15}
    v_lshlrev_b32 v{V_T0}, 8, v{V_T0}
    v_lshlrev_b32 v{V_T1}, 4, v{V_G}
    v_add_u32 v{V_T0}, v{V_T0}, v{V_T1}
    """)
    for j in range(4):
        a(f"ds_read_b128 {vr(QF + 4 * j, 4)}, v{V_T0} offset:{L_BF2 + 64 * j}")
    a(f"""
    v_lshlrev_b32 v{V_T1}, 13, v{V_L15}
    v_lshlrev_b32 v{V_T2}, 4, v{V_G}
    v_add_u32 v{V_T1}, v{V_T1}, v{V_T2}
    s_lshl_b32 s{S_T0}, s{S_WAVE}, 19
    """)
    for t in range(4):
        for j in range(4):
            a(f"buffer_load_dwordx4 {vr(wbuf[t * 4 + j], 4)}, v{V_T1}, {sr(SRD2, 4)}, s{S_T0} offen offset:{64 * j}")
        if t != 3:
            a(f"s_add_u32 s{S_T0}, s{S_T0}, {16 * 8192}")
    a("s_waitcnt lgkmcnt(0)")
    a(f"""
    v_lshlrev_b32 v{V_T0}, 15, v{V_L15}
    v_lshlrev_b32 v{V_T2}, 3, v{V_G}
    v_add_u32 v{V_T0}, v{V_T0}, v{V_T2}
    s_lshl_b32 s{S_T0}, s2, 10
    s_lshl_b32 s{S_T1}, s{S_WAVE}, 7
    s_add_u32 s{S_T0}, s{S_T0}, s{S_T1}
    v_add_u32 v{V_T0}, s{S_T0}, v{V_T0}
    """)
    for t in range(4):
        acc = 48 + 4 * t
        a(f"s_waitcnt vmcnt({12 - 4 * t})")
        for j in range(4):
            c = "0" if j == 0 else vr(acc, 4)
            a(f"v_mfma_f32_16x16x32_bf16 {vr(acc, 4)}, {vr(wbuf[t * 4 + j], 4)}, {vr(QF + 4 * j, 4)}, {c}")
    a("s_nop 7\ns_nop 3")
    a(f"v_cmp_gt_u32 vcc, 2, v{V_L15}\ns_and_saveexec_b64 {sr(S_SAVE, 2)}, vcc")
    for t in range(4):
        acc = 48 + 4 * t
        a(f"""
        v_cvt_pk_bf16_f32 v{16 + 2 * t}, v{acc}, v{acc + 1}
        v_cvt_pk_bf16_f32 v{17 + 2 * t}, v{acc + 2}, v{acc + 3}
        buffer_store_dwordx2 {vr(16 + 2 * t, 2)}, v{V_T0}, {sr(SRD3, 4)}, 0 offen offset:{32 * t}
        """)
    a(f"s_mov_b64 exec, {sr(S_SAVE, 2)}")
    a.label("L_prepa_end")
    a("s_endpgm")


def gen_B_role(a):
    KA, VA, KB, VB = 64, 80, 96, 112
    QF = 32
    AT = 48
    V_S = 12
    V_O = 16
    V_PK = 20
    V_L, V_TM, V_M, V_NMC = 24, 25, 26, 27
    V_OFFK, V_OFFV = 30, 31
    a(f"""
    s_sub_u32 s{S_T0}, s2, {NA_WG}
    s_and_b32 s{S_T1}, s{S_T0}, 7
    s_lshr_b32 s{S_T2}, s{S_T0}, 3
    s_and_b32 s{S_T3}, s{S_T2}, 3
    s_lshl_b32 s{S_T3}, s{S_T3}, 3
    s_add_u32 s{S_H}, s{S_T1}, s{S_T3}
    s_lshr_b32 s{S_T2}, s{S_T2}, 2
    s_lshr_b32 s{S_B}, s{S_T2}, 2
    s_and_b32 s{S_Q}, s{S_T2}, 3
    """)
    a(f"""
    s_lshl_b32 s{S_T0}, s{S_B}, 5
    s_add_u32 s{S_T0}, s{S_T0}, s{S_H}
    s_lshl_b32 s{S_T0}, s{S_T0}, 21
    s_lshl_b32 s{S_T1}, s{S_Q}, 19
    s_add_u32 s{S_T0}, s{S_T0}, s{S_T1}
    s_lshl_b32 s{S_T1}, s{S_WAVE}, 16
    s_add_u32 s{S_OFF}, s{S_T0}, s{S_T1}
    """)
    make_srd(a, SRD0, P_BK, S_OFF, 65536)
    make_srd(a, SRD1, P_BV, S_OFF, 65536)
    make_srd(a, SRD2, P_BX, None, 2048)
    a(f"s_lshl_b32 s{S_OFF}, s{S_H}, 8")
    make_srd(a, SRD3, P_BWQ, S_OFF, 0)
    a(f"s_sub_u32 s{SRD3 + 2}, {512 * 8192}, s{S_OFF}")
    a(f"""
    v_lshlrev_b32 v{V_OFFK}, 8, v{V_L15}
    v_lshlrev_b32 v{V_T0}, 4, v{V_G}
    v_add_u32 v{V_OFFK}, v{V_OFFK}, v{V_T0}
    v_lshlrev_b32 v{V_OFFV}, 10, v{V_G}
    v_lshlrev_b32 v{V_T0}, 4, v{V_L15}
    v_add_u32 v{V_OFFV}, v{V_OFFV}, v{V_T0}
    """)

    def loadK(buf, soff):
        for j in range(4):
            a(f"buffer_load_dwordx4 {vr(buf + 4 * j, 4)}, v{V_OFFK}, {sr(SRD0, 4)}, {soff} offen offset:{64 * j}")

    def loadV(buf, soff):
        for i in range(4):
            a(f"buffer_load_dwordx4 {vr(buf + 4 * i, 4)}, v{V_OFFV}, {sr(SRD1, 4)}, {soff} offen offset:{256 * i}")

    def extra():
        loadK(KA, "0")
        loadV(VA, "0")
        return 8

    wbuf = [32 + 4 * i for i in range(8)] + [96 + 4 * i for i in range(8)]
    gemv512_phase(a, SRD3, ('global', SRD2), wbuf, 12, 20, 24, issue_extra=extra)
    a(f"s_mov_b32 s{S_T0}, 4096")
    loadK(KB, f"s{S_T0}")
    loadV(VB, f"s{S_T0}")
    a(f"""
    v_lshlrev_b32 v{V_T0}, 4, v{V_G}
    s_lshl_b32 s{S_T0}, s{S_B}, 8
    v_add_u32 v{V_T0}, s{S_T0}, v{V_T0}
    """)
    for j in range(4):
        a(f"ds_read_b128 {vr(QF + 4 * j, 4)}, v{V_T0} offset:{L_BF2 + 64 * j}")
    a(f"""
    v_mov_b32 v{V_L}, 0
    v_mov_b32 v{V_M}, 0xff800000
    v_mov_b32 v{V_NMC}, 0
    v_mov_b32 v{V_O}, 0
    v_mov_b32 v{V_O + 1}, 0
    v_mov_b32 v{V_O + 2}, 0
    v_mov_b32 v{V_O + 3}, 0
    s_mov_b32 s{S_LOOP}, 8192
    s_waitcnt lgkmcnt(0)
    """)
    rare_blocks = []

    def tile(K, V):
        rare = a.new("brare")
        back = a.new("bback")
        a("s_waitcnt vmcnt(12)")
        for j in range(4):
            c = "0" if j == 0 else vr(V_S, 4)
            a(f"v_mfma_f32_16x16x32_bf16 {vr(V_S, 4)}, {vr(K + 4 * j, 4)}, {vr(QF + 4 * j, 4)}, {c}")
        loadK(K, f"s{S_LOOP}")
        a(f"""
        s_nop 5
        v_max3_f32 v{V_TM}, v{V_S}, v{V_S + 1}, v{V_S + 2}
        v_max_f32 v{V_TM}, v{V_TM}, v{V_S + 3}
        v_cmp_gt_f32 vcc, v{V_TM}, v{V_M}
        s_cbranch_vccnz {rare}
        """)
        a.label(back)
        for i in range(4):
            a(f"v_fma_f32 v{V_S + i}, v{V_S + i}, s{S_C}, v{V_NMC}")
        for i in range(4):
            a(f"v_exp_f32 v{V_S + i}, v{V_S + i}")
        a("s_nop 0")
        for i in range(4):
            a(f"v_cvt_pk_bf16_f32 v{V_PK + i}, v{V_S + i}, v{V_S + i}")
        a(f"""
        v_add_f32 v{V_S}, v{V_S}, v{V_S + 1}
        v_add_f32 v{V_S + 2}, v{V_S + 2}, v{V_S + 3}
        v_add_f32 v{V_L}, v{V_L}, v{V_S}
        v_add_f32 v{V_L}, v{V_L}, v{V_S + 2}
        """)
        for i in range(4):
            for j in range(4):
                a(f"v_and_b32 v{AT + 4 * i + j}, v{V_PK + i}, v{V_MASK + j}")
        a("s_waitcnt vmcnt(12)")
        for i in range(4):
            a(f"v_mfma_f32_16x16x32_bf16 {vr(V_O, 4)}, {vr(AT + 4 * i, 4)}, {vr(V + 4 * i, 4)}, {vr(V_O, 4)}")
        loadV(V, f"s{S_LOOP}")
        a(f"s_add_u32 s{S_LOOP}, s{S_LOOP}, 4096")
        rare_blocks.append((rare, back))

    loop = a.new("bloop")
    a.label(loop)
    tile(KA, VA)
    tile(KB, VB)
    a(f"s_cmp_lt_u32 s{S_LOOP}, {8192 + 16 * 4096}\ns_cbranch_scc1 {loop}")
    done = a.new("bdone")
    a(f"s_branch {done}")
    for rare, back in rare_blocks:
        a.label(rare)
        a(f"""
        v_readlane_b32 s{S_R2}, v{V_TM}, 0
        v_readlane_b32 s{S_R3}, v{V_TM}, 16
        v_readlane_b32 s{S_T4}, v{V_TM}, 32
        v_readlane_b32 s{S_T5}, v{V_TM}, 48
        s_nop 1
        v_max_f32 v{V_TM}, s{S_R2}, v{V_M}
        v_max_f32 v{V_TM}, s{S_R3}, v{V_TM}
        v_max_f32 v{V_TM}, s{S_T4}, v{V_TM}
        v_max_f32 v{V_TM}, s{S_T5}, v{V_TM}
        v_sub_f32 v{V_T0}, v{V_M}, v{V_TM}
        v_mul_f32 v{V_T0}, s{S_C}, v{V_T0}
        v_exp_f32 v{V_T0}, v{V_T0}
        v_mov_b32 v{V_M}, v{V_TM}
        v_mul_f32 v{V_NMC}, s{S_C}, v{V_TM}
        v_sub_f32 v{V_NMC}, 0, v{V_NMC}
        v_mul_f32 v{V_L}, v{V_L}, v{V_T0}
        v_mul_f32 v{V_O}, v{V_O}, v{V_T0}
        v_mul_f32 v{V_O + 1}, v{V_O + 1}, v{V_T0}
        v_mul_f32 v{V_O + 2}, v{V_O + 2}, v{V_T0}
        v_mul_f32 v{V_O + 3}, v{V_O + 3}, v{V_T0}
        s_branch {back}
        """)
    a.label(done)
    a(f"""
    s_waitcnt vmcnt(0)
    s_nop 7
    v_readlane_b32 s{S_R2}, v{V_L}, 0
    v_readlane_b32 s{S_R3}, v{V_L}, 16
    v_readlane_b32 s{S_T4}, v{V_L}, 32
    v_readlane_b32 s{S_T5}, v{V_L}, 48
    s_nop 1
    v_mov_b32 v{V_L}, s{S_R2}
    v_add_f32 v{V_L}, s{S_R3}, v{V_L}
    v_add_f32 v{V_L}, s{S_T4}, v{V_L}
    v_add_f32 v{V_NMC}, s{S_T5}, v{V_L}
    v_lshlrev_b32 v{V_T0}, 5, v{V_L15}
    v_lshlrev_b32 v{V_T1}, 4, v{V_G}
    v_add_u32 v{V_T0}, v{V_T0}, v{V_T1}
    s_lshl_b32 s{S_T0}, s{S_WAVE}, 9
    v_add_u32 v{V_T0}, s{S_T0}, v{V_T0}
    s_lshl_b32 s{S_T0}, s{S_WAVE}, 3
    v_mov_b32 v{V_T1}, s{S_T0}
    v_cmp_gt_u32 vcc, 32, v{V_LANE}
    s_and_saveexec_b64 {sr(S_SAVE, 2)}, vcc
    ds_write_b128 v{V_T0}, {vr(V_O, 4)} offset:{L_PART}
    ds_write_b64 v{V_T1}, {vr(V_M, 2)} offset:{L_STAT}
    s_mov_b64 exec, {sr(S_SAVE, 2)}
    s_waitcnt lgkmcnt(0)
    s_barrier
    """)
    ST = 32
    a(f"v_mov_b32 v{V_T0}, 0")
    for k in range(4):
        a(f"ds_read_b128 {vr(ST + 4 * k, 4)}, v{V_T0} offset:{L_STAT + 16 * k}")
    a(f"""
    v_and_b32 v{V_T1}, 127, v{V_TID}
    v_lshlrev_b32 v{V_T2}, 2, v{V_T1}
    """)
    for w in range(8):
        a(f"ds_read_b32 v{48 + w}, v{V_T2} offset:{L_PART + 512 * w}")
    a("s_waitcnt lgkmcnt(0)")
    MG = 56
    a(f"""
    v_max3_f32 v{MG}, v{ST}, v{ST + 2}, v{ST + 4}
    v_max3_f32 v{MG}, v{MG}, v{ST + 6}, v{ST + 8}
    v_max3_f32 v{MG}, v{MG}, v{ST + 10}, v{ST + 12}
    v_max_f32 v{MG}, v{MG}, v{ST + 14}
    """)
    for w in range(8):
        a(f"""
        v_sub_f32 v{ST + 2 * w}, v{ST + 2 * w}, v{MG}
        v_mul_f32 v{ST + 2 * w}, s{S_C}, v{ST + 2 * w}
        v_exp_f32 v{ST + 2 * w}, v{ST + 2 * w}
        """)
    LG = 57
    a(f"s_nop 0\nv_mul_f32 v{LG}, v{ST}, v{ST + 1}\nv_mul_f32 v58, v{ST}, v48")
    for w in range(1, 8):
        a(f"v_fmac_f32 v{LG}, v{ST + 2 * w}, v{ST + 2 * w + 1}")
        a(f"v_fmac_f32 v58, v{ST + 2 * w}, v{48 + w}")
    a(f"""
    v_cvt_pk_bf16_f32 v58, v58, v58
    v_lshlrev_b32 v{V_T1}, 1, v{V_T1}
    ds_write_b16 v{V_T1}, v58 offset:{L_BF}
    s_waitcnt lgkmcnt(0)
    s_barrier
    """)
    a(f"s_lshl_b32 s{S_OFF}, s{S_H}, 17")
    make_srd(a, SRD2, P_BWO, S_OFF, 131072)
    wbuf = [64 + 4 * i for i in range(16)]
    proj_phase(a, SRD2, L_BF, False, wbuf, 12, 20, 24)
    a(f"""
    s_lshl_b32 s{S_T0}, s{S_B}, 5
    s_add_u32 s{S_T0}, s{S_T0}, s{S_H}
    s_lshl_b32 s{S_T0}, s{S_T0}, 2
    s_add_u32 s{S_T0}, s{S_T0}, s{S_Q}
    s_lshl_b32 s{S_OFF}, s{S_T0}, 11
    s_add_u32 s{S_OFF}, s{S_OFF}, {WS_YB}
    """)
    make_srd(a, SRD3, P_WS, S_OFF, 2048)
    a(f"""
    s_lshl_b32 s{S_OFF}, s{S_T0}, 3
    s_add_u32 s{S_OFF}, s{S_OFF}, {WS_BSTAT}
    """)
    make_srd(a, SRD4, P_WS, S_OFF, 8)
    a(f"""
    v_lshlrev_b32 v{V_T0}, 2, v{V_TID}
    ds_read_b32 v{V_T1}, v{V_T0} offset:{L_YP}
    ds_read_b32 v{V_T2}, v{V_T0} offset:{L_YP + 4096}
    s_waitcnt lgkmcnt(0)
    v_add_f32 v{V_T1}, v{V_T1}, v{V_T2}
    buffer_store_dword v{V_T1}, v{V_T0}, {sr(SRD3, 4)}, 0 offen
    v_lshlrev_b32 v{V_T0}, 3, v{V_TID}
    buffer_store_dwordx2 {vr(MG, 2)}, v{V_T0}, {sr(SRD4, 4)}, 0 offen
    s_endpgm
    """)


LA_X = 0
LA_T = 32768
LA_ROW = 144
LA_END = LA_T + 8 * 32 * LA_ROW


def gen_A_role(a):
    QF = 16
    ACC = 32
    C0, C1 = 64, 80
    V_S = 96
    TX = 112
    V_P = 8
    V_OFFC, V_WT, V_XW, V_XR, V_TR = 2, 3, 4, 5, 6
    V_M, V_L, V_NMC, V_TM = 7, 124, 125, 126
    TXN = 12
    a(f"""
    s_lshr_b32 s{S_B}, s2, 4
    s_and_b32 s{S_Q}, s2, 15
    s_lshl_b32 s{S_T0}, s{S_B}, 23
    s_lshl_b32 s{S_T1}, s{S_Q}, 19
    s_add_u32 s{S_OFF}, s{S_T0}, s{S_T1}
    """)
    make_srd(a, SRD0, P_CKV, S_OFF, 512 * 1024)
    a(f"s_lshl_b32 s{S_OFF}, s{S_B}, 15")
    make_srd(a, SRD1, P_WS, S_OFF, 32768)
    a(f"""
    v_and_b32 v{V_T0}, 31, v{V_LANE}
    v_lshrrev_b32 v{V_T1}, 5, v{V_LANE}
    v_lshlrev_b32 v{V_T2}, 10, v{V_T0}
    v_lshlrev_b32 v{V_T3}, 4, v{V_T1}
    v_add_u32 v{V_T2}, v{V_T2}, v{V_T3}
    s_lshl_b32 s{S_T0}, s{S_WAVE}, 7
    v_add_u32 v12, s{S_T0}, v{V_T2}
    """)
    for kk in range(4):
        a(f"buffer_load_dwordx4 {vr(QF + 4 * kk, 4)}, v12, {sr(SRD1, 4)}, 0 offen offset:{32 * kk}")
    for kk in range(4):
        a(f"buffer_load_dwordx4 {vr(C0 + 4 * kk, 4)}, v12, {sr(SRD0, 4)}, 0 offen offset:{32 * kk}")
    a(f"s_mov_b32 s{S_T0}, 32768")
    for kk in range(4):
        a(f"buffer_load_dwordx4 {vr(C1 + 4 * kk, 4)}, v12, {sr(SRD0, 4)}, s{S_T0} offen offset:{32 * kk}")
    a(f"""
    v_mul_u32_u24 v13, {LA_ROW}, v{V_T0}
    v_add_u32 v13, v13, v{V_T3}
    s_mul_i32 s{S_T0}, s{S_WAVE}, {32 * LA_ROW}
    s_add_u32 s{S_T0}, s{S_T0}, {LA_T}
    v_add_u32 v13, s{S_T0}, v13
    v_lshlrev_b32 v14, 4, v{V_LANE}
    s_lshl_b32 s{S_T1}, s{S_WAVE}, 12
    v_add_u32 v15, s{S_T1}, v14
    """)
    a(f"""
    v_lshrrev_b32 v{V_T0}, 1, v{V_G}
    v_lshlrev_b32 v{V_T0}, 2, v{V_T0}
    v_lshrrev_b32 v{V_T1}, 2, v{V_L15}
    v_add_u32 v{V_T0}, v{V_T0}, v{V_T1}
    v_mul_u32_u24 v{V_T0}, {LA_ROW}, v{V_T0}
    v_and_b32 v{V_T1}, 1, v{V_G}
    v_lshlrev_b32 v{V_T1}, 5, v{V_T1}
    v_add_u32 v{V_T0}, v{V_T0}, v{V_T1}
    v_and_b32 v{V_T1}, 3, v{V_L15}
    v_lshlrev_b32 v{V_T1}, 3, v{V_T1}
    v_add_u32 v{V_T0}, v{V_T0}, v{V_T1}
    v_add_u32 v{V_TR}, s{S_T0}, v{V_T0}
    v_mov_b32 v{V_OFFC}, v12
    v_mov_b32 v{V_WT}, v13
    v_mov_b32 v{V_XR}, v14
    v_mov_b32 v{V_XW}, v15
    v_mov_b32 v{V_M}, 0xff800000
    v_mov_b32 v{V_L}, 0
    v_mov_b32 v{V_NMC}, 0
    s_mov_b32 s{S_LOOP}, 65536
    """)
    for i in range(32):
        a(f"v_mov_b32 v{ACC + i}, 0")
    rare_blocks = []

    def tile(C, xb):
        rare = a.new("arare")
        back = a.new("aback")
        a("s_waitcnt vmcnt(4)")
        for kk in range(4):
            a(f"ds_write_b128 v{V_WT}, {vr(C + 4 * kk, 4)} offset:{32 * kk}")
        for kk in range(4):
            c = "0" if kk == 0 else vr(V_S, 16)
            a(f"v_mfma_f32_32x32x16_bf16 {vr(V_S, 16)}, {vr(C + 4 * kk, 4)}, {vr(QF + 4 * kk, 4)}, {c}")
        a("s_nop 7\ns_nop 5\ns_barrier")
        for q in range(4):
            a(f"ds_write_b128 v{V_XW}, {vr(V_S + 4 * q, 4)} offset:{LA_X + q * 1024}")
        a("s_waitcnt lgkmcnt(0)")
        for kk in range(4):
            a(f"buffer_load_dwordx4 {vr(C + 4 * kk, 4)}, v{V_OFFC}, {sr(SRD0, 4)}, s{S_LOOP} offen offset:{32 * kk}")
        a(f"s_add_u32 s{S_LOOP}, s{S_LOOP}, 32768")
        a("s_barrier")
        for q in range(4):
            a(f"ds_read_b128 {vr(V_S + 4 * q, 4)}, v{V_XR} offset:{LA_X + q * 1024}")
        for w in range(1, 8):
            for q in range(3):
                a(f"ds_read_b128 {vr(TX + 4 * q, 4)}, v{V_XR} offset:{LA_X + w * 4096 + q * 1024}")
            a("s_waitcnt lgkmcnt(0)")
            for q in range(3):
                for i in range(4):
                    a(f"v_add_f32 v{V_S + 4 * q + i}, v{V_S + 4 * q + i}, v{TX + 4 * q + i}")
            a(f"ds_read_b128 {vr(TX, 4)}, v{V_XR} offset:{LA_X + w * 4096 + 3 * 1024}")
            a("s_waitcnt lgkmcnt(0)")
            for i in range(4):
                a(f"v_add_f32 v{V_S + 12 + i}, v{V_S + 12 + i}, v{TX + i}")
        a(f"v_max3_f32 v{V_TM}, v{V_S}, v{V_S + 1}, v{V_S + 2}")
        for k in range(3, 15, 2):
            a(f"v_max3_f32 v{V_TM}, v{V_TM}, v{V_S + k}, v{V_S + k + 1}")
        a(f"""
        v_max_f32 v{V_TM}, v{V_TM}, v{V_S + 15}
        v_cmp_gt_f32 vcc, v{V_TM}, v{V_M}
        s_cbranch_vccnz {rare}
        """)
        a.label(back)
        for i in range(16):
            a(f"v_fma_f32 v{V_S + i}, v{V_S + i}, s{S_C}, v{V_NMC}")
        for i in range(16):
            a(f"v_exp_f32 v{V_S + i}, v{V_S + i}")
        a("s_nop 0")
        for i in range(8):
            a(f"v_cvt_pk_bf16_f32 v{V_P + i}, v{V_S + 2 * i}, v{V_S + 2 * i + 1}")
        for i in range(16):
            a(f"v_add_f32 v{V_L}, v{V_L}, v{V_S + i}")
        for ct in range(2):
            for kh in range(2):
                t = TX + 4 * ((ct * 2 + kh) % 3)
                base = (kh * 16) * LA_ROW + ct * 64
                a(f"ds_read_b64_tr_b16 {vr(t, 2)}, v{V_TR} offset:{base}")
                a(f"ds_read_b64_tr_b16 {vr(t + 2, 2)}, v{V_TR} offset:{base + 8 * LA_ROW}")
                a("s_waitcnt lgkmcnt(0)")
                a(f"v_mfma_f32_32x32x16_bf16 {vr(ACC + 16 * ct, 16)}, {vr(t, 4)}, {vr(V_P + 4 * kh, 4)}, {vr(ACC + 16 * ct, 16)}")
        rare_blocks.append((rare, back))

    loop = a.new("aloop")
    a.label(loop)
    tile(C0, 0)
    tile(C1, 1)
    a(f"s_cmp_lt_u32 s{S_LOOP}, {65536 + 16 * 32768}\ns_cbranch_scc1 {loop}")
    done = a.new("adone")
    a(f"s_branch {done}")
    for rare, back in rare_blocks:
        a.label(rare)
        a(f"""
        v_mov_b32 v{TX}, v{V_TM}
        v_mov_b32 v{TX + 1}, v{V_TM}
        s_nop 1
        v_permlane32_swap_b32 v{TX}, v{TX + 1}
        s_nop 1
        v_max3_f32 v{V_TM}, v{TX}, v{TX + 1}, v{V_M}
        v_sub_f32 v{TX}, v{V_M}, v{V_TM}
        v_mul_f32 v{TX}, s{S_C}, v{TX}
        v_exp_f32 v{TX}, v{TX}
        v_mov_b32 v{V_M}, v{V_TM}
        v_mul_f32 v{V_NMC}, s{S_C}, v{V_TM}
        v_sub_f32 v{V_NMC}, 0, v{V_NMC}
        v_mul_f32 v{V_L}, v{V_L}, v{TX}
        s_nop 7
        s_nop 7
        """)
        for i in range(32):
            a(f"v_mul_f32 v{ACC + i}, v{ACC + i}, v{TX}")
        a(f"s_branch {back}")
    a.label(done)
    a(f"""
    s_waitcnt vmcnt(0)
    s_lshl_b32 s{S_T0}, s2, 16
    s_add_u32 s{S_OFF}, s{S_T0}, {WS_APART}
    """)
    make_srd(a, SRD2, P_WS, S_OFF, 65536)
    a(f"""
    s_lshl_b32 s{S_T0}, s2, 8
    s_add_u32 s{S_OFF}, s{S_T0}, {WS_ASTAT}
    """)
    make_srd(a, SRD3, P_WS, S_OFF, 256)
    a(f"""
    v_and_b32 v{TX}, 31, v{V_LANE}
    v_lshrrev_b32 v{TX + 1}, 5, v{V_LANE}
    v_lshlrev_b32 v{TX + 2}, 11, v{TX}
    v_lshlrev_b32 v{TX + 1}, 4, v{TX + 1}
    v_add_u32 v{TX + 2}, v{TX + 2}, v{TX + 1}
    s_lshl_b32 s{S_T0}, s{S_WAVE}, 8
    v_add_u32 v{TX + 2}, s{S_T0}, v{TX + 2}
    s_nop 7
    s_nop 7
    """)
    for ct in range(2):
        for q4 in range(4):
            a(f"buffer_store_dwordx4 {vr(ACC + 16 * ct + 4 * q4, 4)}, v{TX + 2}, {sr(SRD2, 4)}, 0 offen offset:{ct * 128 + q4 * 32}")
    a(f"""
    v_mov_b32 v{TX + 4}, v{V_L}
    v_mov_b32 v{TX + 5}, v{V_L}
    s_nop 1
    v_permlane32_swap_b32 v{TX + 4}, v{TX + 5}
    s_nop 1
    v_add_f32 v{TX + 7}, v{TX + 4}, v{TX + 5}
    v_mov_b32 v{TX + 6}, v{V_M}
    v_lshlrev_b32 v{TX + 3}, 3, v{V_TID}
    buffer_store_dwordx2 {vr(TX + 6, 2)}, v{TX + 3}, {sr(SRD3, 4)}, 0 offen
    s_endpgm
    """)


def gen_main(a):
    a.raw(".p2align 8")
    a.label("main_kernel")
    a(f"s_cmp_ge_u32 s2, {NA_WG + NB_WG}\ns_cbranch_scc1 L_main_end")
    load_kernargs(a)
    lane_setup(a)
    make_masks(a)
    perm_consts(a)
    a("s_waitcnt lgkmcnt(0)")
    a(f"s_cmp_lt_u32 s2, {NA_WG}\ns_cbranch_scc1 L_main_A")
    gen_B_role(a)
    a.label("L_main_A")
    gen_A_role(a)
    a.label("L_main_end")
    a("s_endpgm")


def gen_finishA(a):
    a.raw(".p2align 8")
    a.label("finisha_kernel")
    a("s_cmp_ge_u32 s2, 32\ns_cbranch_scc1 L_fina_end")
    load_kernargs(a)
    lane_setup(a)
    make_masks(a)
    perm_consts(a)
    a("s_waitcnt lgkmcnt(0)")
    make_srd_imm(a, SRD0, P_WS, WS_APART, 2 * NSA * 65536)
    make_srd_imm(a, SRD1, P_WS, WS_ASTAT, 2 * NSA * 256)
    a(f"s_lshl_b32 s{S_OFF}, s2, 8")
    make_srd(a, SRD2, P_WUV, S_OFF, 0)
    a(f"s_sub_u32 s{SRD2 + 2}, {512 * 8192}, s{S_OFF}")
    a(f"s_lshl_b32 s{S_OFF}, s2, 17")
    make_srd(a, SRD3, P_AWO, S_OFF, 131072)
    a(f"s_lshl_b32 s{S_OFF}, s2, 12\ns_add_u32 s{S_OFF}, s{S_OFF}, {WS_YA}")
    make_srd(a, SRD4, P_WS, S_OFF, 4096)
    PART = 64
    STAT = 32
    a(f"""
    v_lshrrev_b32 v{V_T0}, 8, v{V_TID}
    v_and_b32 v{V_T1}, 255, v{V_TID}
    v_lshlrev_b32 v{V_T2}, 20, v{V_T0}
    v_lshlrev_b32 v{V_T3}, 3, v{V_T1}
    v_add_u32 v{V_T2}, v{V_T2}, v{V_T3}
    s_lshl_b32 s{S_T0}, s2, 11
    v_add_u32 v{V_T2}, s{S_T0}, v{V_T2}
    v_lshlrev_b32 v{V_T3}, 12, v{V_T0}
    s_lshl_b32 s{S_T0}, s2, 3
    v_add_u32 v{V_T3}, s{S_T0}, v{V_T3}
    s_mov_b32 s{S_T0}, 0
    """)
    for s in range(NSA):
        a(f"buffer_load_dwordx2 {vr(STAT + 2 * s, 2)}, v{V_T3}, {sr(SRD1, 4)}, 0 offen offset:{256 * s}")
    for s in range(NSA):
        a(f"buffer_load_dwordx2 {vr(PART + 2 * s, 2)}, v{V_T2}, {sr(SRD0, 4)}, s{S_T0} offen")
        if s != NSA - 1:
            a(f"s_add_u32 s{S_T0}, s{S_T0}, 65536")
    a(f"s_waitcnt vmcnt({NSA})")
    MG, LG, A0, A1 = 12, 13, 14, 15
    a(f"v_max_f32 v{MG}, v{STAT}, v{STAT + 2}")
    for s in range(2, NSA, 2):
        a(f"v_max3_f32 v{MG}, v{MG}, v{STAT + 2 * s}, v{STAT + 2 * s + 2}")
    for s in range(NSA):
        a(f"""
        v_sub_f32 v{STAT + 2 * s}, v{STAT + 2 * s}, v{MG}
        v_mul_f32 v{STAT + 2 * s}, s{S_C}, v{STAT + 2 * s}
        v_exp_f32 v{STAT + 2 * s}, v{STAT + 2 * s}
        """)
    a(f"s_waitcnt vmcnt(0)\nv_mul_f32 v{LG}, v{STAT}, v{STAT + 1}\nv_mul_f32 v{A0}, v{STAT}, v{PART}\nv_mul_f32 v{A1}, v{STAT}, v{PART + 1}")
    for s in range(1, NSA):
        a(f"""
        v_fmac_f32 v{LG}, v{STAT + 2 * s}, v{STAT + 2 * s + 1}
        v_fmac_f32 v{A0}, v{STAT + 2 * s}, v{PART + 2 * s}
        v_fmac_f32 v{A1}, v{STAT + 2 * s}, v{PART + 2 * s + 1}
        """)
    a(f"""
    v_rcp_f32 v{LG}, v{LG}
    s_nop 0
    v_mul_f32 v{A0}, v{A0}, v{LG}
    v_mul_f32 v{A1}, v{A1}, v{LG}
    v_cvt_pk_bf16_f32 v{A0}, v{A0}, v{A1}
    v_lshlrev_b32 v{V_T0}, 2, v{V_TID}
    ds_write_b32 v{V_T0}, v{A0} offset:{L_BF}
    s_waitcnt lgkmcnt(0)
    s_barrier
    """)
    wbuf = [64 + 4 * i for i in range(16)]
    gemv512_phase(a, SRD2, ('lds', L_BF), wbuf, 16, 24, 28)
    proj_phase(a, SRD3, L_BF2, True, wbuf, 16, 24, 28)
    a(f"""
    v_lshlrev_b32 v{V_T0}, 2, v{V_TID}
    ds_read_b32 v12, v{V_T0} offset:{L_YP}
    ds_read_b32 v13, v{V_T0} offset:{L_YP + 4096}
    ds_read_b32 v14, v{V_T0} offset:{L_YP + 2048}
    ds_read_b32 v15, v{V_T0} offset:{L_YP + 4096 + 2048}
    s_waitcnt lgkmcnt(0)
    v_add_f32 v12, v12, v13
    v_add_f32 v14, v14, v15
    buffer_store_dword v12, v{V_T0}, {sr(SRD4, 4)}, 0 offen
    buffer_store_dword v14, v{V_T0}, {sr(SRD4, 4)}, 0 offen offset:2048
    """)
    a.label("L_fina_end")
    a("s_endpgm")


def gen_final(a):
    a.raw(".p2align 8")
    a.label("final_kernel")
    a("s_cmp_ge_u32 s2, 32\ns_cbranch_scc1 L_final_end")
    load_kernargs(a)
    lane_setup(a)
    a("s_waitcnt lgkmcnt(0)")
    a(f"""
    s_and_b32 s{S_Q}, s2, 7
    s_lshr_b32 s{S_B}, s2, 3
    s_and_b32 s{S_B}, s{S_B}, 1
    """)
    make_srd(a, SRD4, P_OUT, None, 4096)
    ACC = 12
    a("s_cmp_ge_u32 s2, 16\ns_cbranch_scc1 L_final_B")
    make_srd_imm(a, SRD0, P_WS, WS_YA, 32 * 4096)
    a(f"""
    s_lshl_b32 s{S_T0}, s{S_B}, 11
    s_lshl_b32 s{S_T1}, s{S_Q}, 8
    s_add_u32 s{S_T0}, s{S_T0}, s{S_T1}
    s_lshl_b32 s{S_T1}, s{S_WAVE}, 14
    s_add_u32 s{S_T0}, s{S_T0}, s{S_T1}
    v_lshlrev_b32 v{V_T0}, 2, v{V_LANE}
    v_add_u32 v{V_T0}, s{S_T0}, v{V_T0}
    s_mov_b32 s{S_T1}, 4096
    s_mov_b32 s{S_T2}, 8192
    s_mov_b32 s{S_T3}, 12288
    buffer_load_dword v16, v{V_T0}, {sr(SRD0, 4)}, 0 offen
    buffer_load_dword v17, v{V_T0}, {sr(SRD0, 4)}, s{S_T1} offen
    buffer_load_dword v18, v{V_T0}, {sr(SRD0, 4)}, s{S_T2} offen
    buffer_load_dword v19, v{V_T0}, {sr(SRD0, 4)}, s{S_T3} offen
    s_waitcnt vmcnt(0)
    v_add_f32 v16, v16, v17
    v_add_f32 v18, v18, v19
    v_add_f32 v{ACC}, v16, v18
    s_mov_b32 s{S_T5}, 0
    s_branch L_final_red
    """)
    a.label("L_final_B")
    make_srd_imm(a, SRD0, P_WS, WS_YB, 2 * 32 * 4 * 2048)
    make_srd_imm(a, SRD1, P_WS, WS_BSTAT, 2 * 32 * 32)
    a(f"""
    s_lshl_b32 s{S_T0}, s{S_B}, 5
    s_lshl_b32 s{S_T1}, s{S_WAVE}, 2
    s_add_u32 s{S_T0}, s{S_T0}, s{S_T1}
    s_lshl_b32 s{S_T1}, s{S_T0}, 13
    s_lshl_b32 s{S_T2}, s{S_Q}, 8
    s_add_u32 s{S_T1}, s{S_T1}, s{S_T2}
    v_lshlrev_b32 v{V_T0}, 2, v{V_LANE}
    v_add_u32 v{V_T0}, s{S_T1}, v{V_T0}
    s_lshl_b32 s{S_T1}, s{S_T0}, 5
    v_mov_b32 v{V_T1}, s{S_T1}
    """)
    ST = 32
    Y = 64
    for k in range(4):
        a(f"buffer_load_dwordx4 {vr(ST + 8 * k, 4)}, v{V_T1}, {sr(SRD1, 4)}, 0 offen offset:{32 * k}")
        a(f"buffer_load_dwordx4 {vr(ST + 8 * k + 4, 4)}, v{V_T1}, {sr(SRD1, 4)}, 0 offen offset:{32 * k + 16}")
    a(f"s_mov_b32 s{S_T1}, 0")
    for k in range(4):
        for s in range(4):
            a(f"buffer_load_dword v{Y + 4 * k + s}, v{V_T0}, {sr(SRD0, 4)}, s{S_T1} offen")
            if not (k == 3 and s == 3):
                a(f"s_add_u32 s{S_T1}, s{S_T1}, 2048")
    a(f"s_waitcnt vmcnt(0)\nv_mov_b32 v{ACC}, 0")
    for k in range(4):
        b = ST + 8 * k
        a(f"""
        v_max3_f32 v16, v{b}, v{b + 2}, v{b + 4}
        v_max_f32 v16, v16, v{b + 6}
        """)
        for s in range(4):
            a(f"""
            v_sub_f32 v{b + 2 * s}, v{b + 2 * s}, v16
            v_mul_f32 v{b + 2 * s}, s{S_C}, v{b + 2 * s}
            v_exp_f32 v{b + 2 * s}, v{b + 2 * s}
            """)
        a(f"s_nop 0\nv_mul_f32 v17, v{b}, v{b + 1}\nv_mul_f32 v18, v{b}, v{Y + 4 * k}")
        for s in range(1, 4):
            a(f"v_fmac_f32 v17, v{b + 2 * s}, v{b + 2 * s + 1}\nv_fmac_f32 v18, v{b + 2 * s}, v{Y + 4 * k + s}")
        a(f"v_rcp_f32 v17, v17\ns_nop 0\nv_fmac_f32 v{ACC}, v18, v17")
    a(f"s_mov_b32 s{S_T5}, 1024")
    a.label("L_final_red")
    a(f"""
    v_lshlrev_b32 v{V_T0}, 2, v{V_TID}
    ds_write_b32 v{V_T0}, v{ACC}
    s_waitcnt lgkmcnt(0)
    s_barrier
    s_cmp_lg_u32 s{S_WAVE}, 0
    s_cbranch_scc1 L_final_end
    """)
    for w in range(8):
        a(f"ds_read_b32 v{16 + w}, v{V_T0} offset:{256 * w}")
    a("s_waitcnt lgkmcnt(0)")
    for w in range(1, 8):
        a(f"v_add_f32 v16, v16, v{16 + w}")
    a(f"""
    v_cvt_pk_bf16_f32 v16, v16, v16
    s_lshl_b32 s{S_T0}, s{S_B}, 11
    s_lshl_b32 s{S_T1}, s{S_Q}, 7
    s_add_u32 s{S_T0}, s{S_T0}, s{S_T1}
    s_add_u32 s{S_T0}, s{S_T0}, s{S_T5}
    v_lshlrev_b32 v{V_T0}, 1, v{V_LANE}
    buffer_store_short v16, v{V_T0}, {sr(SRD4, 4)}, s{S_T0} offen
    """)
    a.label("L_final_end")
    a("s_endpgm")


def descriptor(name, vgpr):
    return f"""
.amdhsa_kernel {name}
  .amdhsa_next_free_vgpr {vgpr}
  .amdhsa_next_free_sgpr 96
  .amdhsa_accum_offset {(vgpr + 3) // 4 * 4}
  .amdhsa_group_segment_fixed_size 0
  .amdhsa_kernarg_size 112
  .amdhsa_user_sgpr_count 2
  .amdhsa_user_sgpr_kernarg_segment_ptr 1
  .amdhsa_system_sgpr_workgroup_id_x 1
.end_amdhsa_kernel
"""


def main():
    a = Asm()
    gen_prepA(a)
    gen_main(a)
    gen_finishA(a)
    gen_final(a)
    launches = [
        ("prepa_kernel", 32, L_END_SMALL),
        ("main_kernel", NA_WG + NB_WG, LA_END),
        ("finisha_kernel", 32, L_END_SMALL),
        ("final_kernel", 32, 2048),
    ]
    txt = HEADER
    for k, g, lds in launches:
        txt += f"; @launch kernel={k} grid=({g},1,1) block=(512,1,1) lds={lds}\n"
    txt += '.amdgcn_target "amdgcn-amd-amdhsa--gfx950"\n.text\n'
    for k, _, _ in launches:
        txt += f".globl {k}\n.type {k},@function\n"
    txt += a.text()
    txt += '.section .rodata,"a"\n.p2align 6\n'
    for k, _, _ in launches:
        txt += ".p2align 6\n" + descriptor(k, 128)
    open(OUT, "w").write(txt)
    print("wrote", OUT, len(txt))


if __name__ == "__main__":
    main()
```

```python
import os
import struct
import sys

EXP = os.environ.get("EXP", "")

NAME = "concat_heads__compressed_kv_cla__mha_block_cached__decode"
OUT = os.environ.get("OUTS", f"cdna_kernels/{NAME}.s")

HEADER = """; Kernarg layout for this problem (112 bytes, ptrs only, base s[0:1]):
"""


def f32bits(x):
    return struct.unpack("<I", struct.pack("<f", x))[0]


import math
CSCALE = (128 ** -0.5) * math.log2(math.e)

NSA = 32
WS_QP = 0
WS_APART = 0x10000
WS_ASTAT = WS_APART + 2 * NSA * 32 * 512 * 4
WS_YA = WS_ASTAT + 0x10000
WS_YB = WS_YA + 32 * 2 * 512 * 4
WS_BSTAT = WS_YB + 2 * 32 * 4 * 512 * 4
WS_END = WS_BSTAT + 0x10000

NA_WG = 2 * NSA
NB_WG = 192
NVGPR = 256


class Asm:
    def __init__(self):
        self.lines = []
        self.uid = 0

    def __call__(self, s):
        for ln in s.strip("\n").split("\n"):
            ln = ln.strip()
            if ln:
                self.lines.append("    " + ln)

    def label(self, l):
        self.lines.append(l + ":")

    def new(self, base):
        self.uid += 1
        return f"L_{base}_{self.uid}"

    def raw(self, s):
        self.lines.append(s)

    def text(self):
        return "\n".join(self.lines) + "\n"


def vr(a, n):
    return f"v[{a}:{a + n - 1}]"


def sr(a, n):
    return f"s[{a}:{a + n - 1}]"


P_AX, P_CKV, P_AWQ, P_WUK, P_WUV, P_AWO, P_BX, P_BK = 16, 18, 20, 22, 24, 26, 28, 30
P_BV, P_BWQ, P_BWO, P_OUT = 32, 34, 36, 38
P_DBG, P_WS = 40, 42
SRD0, SRD1, SRD2, SRD3, SRD4 = 44, 48, 52, 56, 60
S_WAVE = 64
S_C = 65
S_T0, S_T1, S_T2, S_T3, S_T4, S_T5 = 66, 67, 68, 69, 70, 71
S_H, S_B, S_Q = 72, 73, 74
S_LOOP = 75
S_OFF = 76
S_SAVE = 78
S_R0, S_R1, S_R2, S_R3 = 80, 81, 82, 83

V_TID = 0
V_LANE = 1
V_L15 = 2
V_G = 3
V_MASK = 4
V_T0, V_T1, V_T2, V_T3 = 8, 9, 10, 11


def load_kernargs(a):
    a(f"""
    s_load_dwordx16 {sr(16, 16)}, s[0:1], 0
    s_load_dwordx8 {sr(32, 8)}, s[0:1], 64
    s_load_dwordx4 {sr(40, 4)}, s[0:1], 96
    """)


def lane_setup(a):
    a(f"""
    v_and_b32 v{V_LANE}, 63, v{V_TID}
    v_lshrrev_b32 v{V_T0}, 6, v{V_TID}
    v_and_b32 v{V_L15}, 15, v{V_LANE}
    v_readfirstlane_b32 s{S_WAVE}, v{V_T0}
    v_lshrrev_b32 v{V_G}, 4, v{V_LANE}
    s_mov_b32 s{S_C}, {f32bits(CSCALE):#x}
    """)


def make_masks(a):
    a(f"""
    v_and_b32 v{V_T0}, 7, v{V_LANE}
    v_lshrrev_b32 v{V_T1}, 1, v{V_T0}
    v_and_b32 v{V_T0}, 1, v{V_T0}
    v_lshlrev_b32 v{V_T0}, 4, v{V_T0}
    v_mov_b32 v{V_T2}, 0xffff
    v_lshlrev_b32 v{V_T2}, v{V_T0}, v{V_T2}
    """)
    for j in range(4):
        a(f"""
        v_cmp_eq_u32 vcc, {j}, v{V_T1}
        s_nop 1
        v_cndmask_b32 v{V_MASK + j}, 0, v{V_T2}, vcc
        """)


def make_srd(a, srd, ptr, off_sgpr, nbytes):
    if off_sgpr is None:
        a(f"s_mov_b32 s{srd}, s{ptr}\ns_mov_b32 s{srd + 1}, s{ptr + 1}")
    else:
        a(f"s_add_u32 s{srd}, s{ptr}, s{off_sgpr}\ns_addc_u32 s{srd + 1}, s{ptr + 1}, 0")
    a(f"s_mov_b32 s{srd + 2}, {nbytes:#x}\ns_mov_b32 s{srd + 3}, 0x00020000")


def make_srd_imm(a, srd, ptr, off, nbytes):
    a(f"s_add_u32 s{srd}, s{ptr}, {off:#x}\ns_addc_u32 s{srd + 1}, s{ptr + 1}, 0")
    a(f"s_mov_b32 s{srd + 2}, {nbytes:#x}\ns_mov_b32 s{srd + 3}, 0x00020000")


def delta_mfma(a, xregs, i, data, acc, tmp, first=False):
    sel = S_R0 if (i & 1) == 0 else S_R1
    a(f"v_perm_b32 v{tmp + 4}, v{xregs + (i >> 1)}, v{xregs + (i >> 1)}, s{sel}")
    for j in range(4):
        a(f"v_and_b32 v{tmp + j}, v{tmp + 4}, v{V_MASK + j}")
    a("s_nop 1")
    c = "0" if first else vr(acc, 4)
    a(f"v_mfma_f32_16x16x32_bf16 {vr(acc, 4)}, {vr(tmp, 4)}, {vr(data, 4)}, {c}")


def perm_consts(a):
    a(f"s_mov_b32 s{S_R0}, 0x01000100\ns_mov_b32 s{S_R1}, 0x03020302")


L_PART = 0
L_BF = 8192
L_BF2 = 10240
L_STAT = 11264
L_YP = 12288
L_END_SMALL = 20480


def gemv512_xload(a, xsrc, xregs):
    a(f"""
    v_lshrrev_b32 v{V_T0}, 3, v{V_L15}
    v_lshlrev_b32 v{V_T0}, 10, v{V_T0}
    v_lshlrev_b32 v{V_T1}, 5, v{V_G}
    v_add_u32 v{V_T0}, v{V_T0}, v{V_T1}
    s_lshl_b32 s{S_T0}, s{S_WAVE}, 7
    v_add_u32 v{V_T0}, s{S_T0}, v{V_T0}
    """)
    if xsrc[0] == 'global':
        a(f"""
        buffer_load_dwordx4 {vr(xregs, 4)}, v{V_T0}, {sr(xsrc[1], 4)}, 0 offen
        buffer_load_dwordx4 {vr(xregs + 4, 4)}, v{V_T0}, {sr(xsrc[1], 4)}, 0 offen offset:16
        """)
    else:
        a(f"""
        ds_read_b128 {vr(xregs, 4)}, v{V_T0} offset:{xsrc[1]}
        ds_read_b128 {vr(xregs + 4, 4)}, v{V_T0} offset:{xsrc[1] + 16}
        s_waitcnt lgkmcnt(0)
        """)


def gemv512_wloads(a, srd_w, wbuf):
    a(f"""
    v_lshlrev_b32 v{V_T1}, 17, v{V_G}
    v_lshlrev_b32 v{V_T2}, 4, v{V_L15}
    v_add_u32 v{V_T1}, v{V_T1}, v{V_T2}
    s_lshl_b32 s{S_T0}, s{S_WAVE}, 19
    """)
    for i in range(16):
        a(f"buffer_load_dwordx4 {vr(wbuf[i], 4)}, v{V_T1}, {sr(srd_w, 4)}, s{S_T0} offen")
        if i != 15:
            a(f"s_add_u32 s{S_T0}, s{S_T0}, 8192")


def gemv512_compute(a, wbuf, xregs, acc, tmp, nyounger):
    for i in range(16):
        if nyounger is not None:
            a(f"s_waitcnt vmcnt({15 - i + nyounger})")
        delta_mfma(a, xregs, i, wbuf[i], acc, tmp, first=(i == 0))
    a(f"""
    v_lshrrev_b32 v{V_T0}, 1, v{V_G}
    v_lshlrev_b32 v{V_T0}, 9, v{V_T0}
    v_lshlrev_b32 v{V_T1}, 5, v{V_L15}
    v_add_u32 v{V_T0}, v{V_T0}, v{V_T1}
    v_and_b32 v{V_T1}, 1, v{V_G}
    v_lshlrev_b32 v{V_T1}, 4, v{V_T1}
    v_add_u32 v{V_T0}, v{V_T0}, v{V_T1}
    s_lshl_b32 s{S_T0}, s{S_WAVE}, 10
    v_add_u32 v{V_T0}, s{S_T0}, v{V_T0}
    s_nop 7
    ds_write_b128 v{V_T0}, {vr(acc, 4)} offset:{L_PART}
    s_waitcnt lgkmcnt(0)
    s_barrier
    """)
    a(f"""
    v_and_b32 v{V_T0}, 255, v{V_TID}
    v_lshlrev_b32 v{V_T1}, 2, v{V_T0}
    """)
    for w in range(8):
        a(f"ds_read_b32 v{xregs + w}, v{V_T1} offset:{L_PART + w * 1024}")
    a("s_waitcnt lgkmcnt(0)")
    for w in range(1, 8):
        a(f"v_add_f32 v{xregs}, v{xregs}, v{xregs + w}")
    a(f"""
    v_cvt_pk_bf16_f32 v{xregs}, v{xregs}, v{xregs}
    v_lshlrev_b32 v{V_T1}, 1, v{V_T0}
    ds_write_b16 v{V_T1}, v{xregs} offset:{L_BF2}
    s_waitcnt lgkmcnt(0)
    s_barrier
    """)


def gemv512_phase(a, srd_w, xsrc, wbuf, xregs, acc, tmp, issue_extra=None):
    gemv512_xload(a, xsrc, xregs)
    gemv512_wloads(a, srd_w, wbuf)
    nextra = issue_extra() if issue_extra is not None else 0
    gemv512_compute(a, wbuf, xregs, acc, tmp, nextra)


S_PW = 88


def proj_addr(a, v_off):
    a(f"""
    s_and_b32 s{S_T1}, s{S_WAVE}, 3
    s_lshr_b32 s{S_T2}, s{S_WAVE}, 2
    v_lshlrev_b32 v{v_off}, 14, v{V_G}
    v_lshlrev_b32 v{V_T2}, 4, v{V_L15}
    v_add_u32 v{v_off}, v{v_off}, v{V_T2}
    s_lshl_b32 s{S_PW}, s{S_T2}, 16
    s_lshl_b32 s{S_T3}, s{S_T1}, 8
    s_add_u32 s{S_PW}, s{S_PW}, s{S_T3}
    s_add_u32 s{S_PW + 1}, s{S_PW}, 4096
    s_add_u32 s{S_PW + 2}, s{S_PW}, 8192
    s_add_u32 s{S_PW + 3}, s{S_PW}, 12288
    """)


def proj_load(a, srd_w, v_off, wbuf, i):
    a(f"buffer_load_dwordx4 {vr(wbuf[i], 4)}, v{v_off}, {sr(srd_w, 4)}, s{S_PW + (i >> 2)} offen offset:{(i & 3) * 1024}")


def proj_compute(a, xlds, two_b, wbuf, xregs, acc, tmp, waits=True):
    a(f"""
    s_and_b32 s{S_T1}, s{S_WAVE}, 3
    s_lshr_b32 s{S_T2}, s{S_WAVE}, 2
    v_lshlrev_b32 v{V_T0}, 5, v{V_G}
    s_lshl_b32 s{S_T0}, s{S_T2}, 7
    v_add_u32 v{V_T0}, s{S_T0}, v{V_T0}
    """)
    if two_b:
        a(f"""
        v_lshrrev_b32 v{V_T1}, 3, v{V_L15}
        v_lshlrev_b32 v{V_T1}, 8, v{V_T1}
        v_add_u32 v{V_T0}, v{V_T0}, v{V_T1}
        """)
    a(f"""
    ds_read_b128 {vr(xregs, 4)}, v{V_T0} offset:{xlds}
    ds_read_b128 {vr(xregs + 4, 4)}, v{V_T0} offset:{xlds + 16}
    s_waitcnt lgkmcnt(0)
    """)
    for i in range(16):
        if waits:
            a(f"s_waitcnt vmcnt({15 - i})")
        delta_mfma(a, xregs, i, wbuf[i], acc, tmp, first=(i == 0))
    a(f"""
    v_lshrrev_b32 v{V_T0}, 1, v{V_G}
    v_lshlrev_b32 v{V_T0}, 11, v{V_T0}
    v_lshlrev_b32 v{V_T1}, 5, v{V_L15}
    v_add_u32 v{V_T0}, v{V_T0}, v{V_T1}
    v_and_b32 v{V_T1}, 1, v{V_G}
    v_lshlrev_b32 v{V_T1}, 4, v{V_T1}
    v_add_u32 v{V_T0}, v{V_T0}, v{V_T1}
    s_lshl_b32 s{S_T0}, s{S_T2}, 12
    s_lshl_b32 s{S_T3}, s{S_T1}, 9
    s_add_u32 s{S_T0}, s{S_T0}, s{S_T3}
    v_add_u32 v{V_T0}, s{S_T0}, v{V_T0}
    s_nop 7
    ds_write_b128 v{V_T0}, {vr(acc, 4)} offset:{L_YP}
    s_waitcnt lgkmcnt(0)
    s_barrier
    """)


def stamp(a, slot, wg=None):
    if "stamp" not in EXP:
        return
    skip = a.new("stamp")
    a(f"""
    s_cmp_lg_u32 s{S_WAVE}, 0
    s_cbranch_scc1 {skip}
    s_memrealtime s[92:93]
    s_lshl_b32 s94, s2, 5
    s_add_u32 s94, s94, {WS_END}
    s_add_u32 s96, s{P_WS}, s94
    s_addc_u32 s97, s{P_WS + 1}, 0
    s_mov_b32 s98, 32
    s_mov_b32 s99, 0x00020000
    s_waitcnt lgkmcnt(0)
    v_mov_b32 v10, s92
    v_mov_b32 v11, 0
    buffer_store_dword v10, v11, s[96:99], 0 offen offset:{slot * 4}
    """)
    a.label(skip)


SRD_DBG = 84
V_SY0, V_SY1 = 8, 9


def sync_arrive(a, cnt_off):
    skip = a.new("arr_skip")
    a(f"""
    s_waitcnt vmcnt(0) lgkmcnt(0)
    s_barrier
    s_cmp_lg_u32 s{S_WAVE}, 0
    s_cbranch_scc1 {skip}
    v_mov_b32 v{V_SY0}, 1
    v_mov_b32 v{V_SY1}, 0
    s_mov_b64 exec, 1
    buffer_atomic_add v{V_SY0}, v{V_SY1}, {sr(SRD_DBG, 4)}, 0 offen offset:{cnt_off}
    s_mov_b64 exec, -1
    """)
    a.label(skip)


def sync_wait(a, cnt_off, target):
    skip = a.new("sync_skip")
    poll = a.new("sync_poll")
    done = a.new("sync_done")
    a(f"""
    s_cmp_lg_u32 s{S_WAVE}, 0
    s_cbranch_scc1 {skip}
    v_mov_b32 v{V_SY1}, 0
    s_mov_b32 s{S_T5}, 0
    """)
    a.label(poll)
    a(f"""
    buffer_load_dword v{V_SY0}, v{V_SY1}, {sr(SRD_DBG, 4)}, 0 offen offset:{cnt_off} sc1
    s_add_u32 s{S_T5}, s{S_T5}, 1
    s_waitcnt vmcnt(0)
    v_readfirstlane_b32 s{S_T4}, v{V_SY0}
    s_cmp_ge_u32 s{S_T5}, 0x40000
    s_cbranch_scc1 {done}
    s_cmp_ge_u32 s{S_T4}, {target}
    s_cbranch_scc1 {done}
    s_sleep 1
    s_branch {poll}
    """)
    a.label(done)
    a.label(skip)
    a("s_barrier")


A_C = 32


def attnA_preload(a):
    a(f"""
    s_lshr_b32 s{S_B}, s2, 5
    s_and_b32 s{S_Q}, s2, 31
    s_lshl_b32 s{S_T0}, s{S_B}, 23
    s_lshl_b32 s{S_T1}, s{S_Q}, 18
    s_add_u32 s{S_OFF}, s{S_T0}, s{S_T1}
    """)
    make_srd(a, SRD4, P_CKV, S_OFF, 256 * 1024)
    a(f"""
    v_and_b32 v{V_T0}, 7, v{V_LANE}
    v_lshrrev_b32 v{V_T1}, 3, v{V_LANE}
    v_lshlrev_b32 v{V_T2}, 10, v{V_T1}
    v_lshlrev_b32 v{V_T3}, 4, v{V_T0}
    v_add_u32 v{V_T2}, v{V_T2}, v{V_T3}
    s_lshl_b32 s{S_T0}, s{S_WAVE}, 7
    v_add_u32 v31, s{S_T0}, v{V_T2}
    s_mov_b32 s{S_T0}, 0
    """)
    for t in range(8):
        for kk in range(4):
            a(f"buffer_load_dwordx4 {vr(A_C + 16 * t + 4 * kk, 4)}, v31, {sr(SRD4, 4)}, s{S_T0} offen nt")
            if not (t == 7 and kk == 3):
                a(f"s_add_u32 s{S_T0}, s{S_T0}, 8192")
    return 32


def stage_prepA(a):
    a(f"""
    s_lshr_b32 s{S_H}, s2, 1
    s_lshl_b32 s{S_OFF}, s{S_H}, 8
    """)
    make_srd(a, SRD0, P_AX, None, 2048)
    make_srd(a, SRD1, P_AWQ, S_OFF, 0)
    a(f"s_sub_u32 s{SRD1 + 2}, {512 * 8192}, s{S_OFF}")
    make_srd(a, SRD2, P_WUK, S_OFF, 0)
    a(f"s_sub_u32 s{SRD2 + 2}, {512 * 8192}, s{S_OFF}")
    make_srd_imm(a, SRD3, P_WS, WS_QP, 65536)
    wbuf = [160 + 4 * i for i in range(16)]
    ubuf = [224 + 4 * i for i in range(8)]
    QF = 160
    ACC = 176

    def extra():
        a(f"""
        v_lshlrev_b32 v30, 13, v{V_L15}
        v_lshlrev_b32 v{V_T2}, 4, v{V_G}
        v_add_u32 v30, v30, v{V_T2}
        s_and_b32 s{S_T1}, s2, 1
        s_lshl_b32 s{S_T1}, s{S_T1}, 21
        s_lshl_b32 s{S_T2}, s{S_WAVE}, 18
        s_add_u32 s{S_T1}, s{S_T1}, s{S_T2}
        s_add_u32 s{S_T2}, s{S_T1}, {16 * 8192}
        """)
        for t in range(2):
            for j in range(4):
                a(f"buffer_load_dwordx4 {vr(ubuf[t * 4 + j], 4)}, v30, {sr(SRD2, 4)}, s{S_T1 + t} offen offset:{64 * j}")
        return 8

    gemv512_phase(a, SRD1, ('global', SRD0), wbuf, 12, 20, 24, issue_extra=extra)
    a(f"""
    v_and_b32 v{V_T0}, 1, v{V_L15}
    v_lshlrev_b32 v{V_T0}, 8, v{V_T0}
    v_lshlrev_b32 v{V_T1}, 4, v{V_G}
    v_add_u32 v{V_T0}, v{V_T0}, v{V_T1}
    """)
    for j in range(4):
        a(f"ds_read_b128 {vr(QF + 4 * j, 4)}, v{V_T0} offset:{L_BF2 + 64 * j}")
    a(f"""
    v_lshlrev_b32 v{V_T0}, 15, v{V_L15}
    v_lshlrev_b32 v{V_T2}, 3, v{V_G}
    v_add_u32 v{V_T0}, v{V_T0}, v{V_T2}
    s_lshl_b32 s{S_T0}, s2, 9
    s_lshl_b32 s{S_T1}, s{S_WAVE}, 6
    s_add_u32 s{S_T0}, s{S_T0}, s{S_T1}
    v_add_u32 v{V_T0}, s{S_T0}, v{V_T0}
    s_waitcnt lgkmcnt(0) vmcnt(0)
    """)
    for t in range(2):
        acc = ACC + 4 * t
        for j in range(4):
            c = "0" if j == 0 else vr(acc, 4)
            a(f"v_mfma_f32_16x16x32_bf16 {vr(acc, 4)}, {vr(ubuf[t * 4 + j], 4)}, {vr(QF + 4 * j, 4)}, {c}")
    a("s_nop 7\ns_nop 3")
    a(f"v_cmp_gt_u32 vcc, 2, v{V_L15}\ns_and_saveexec_b64 {sr(S_SAVE, 2)}, vcc")
    for t in range(2):
        acc = ACC + 4 * t
        a(f"""
        v_cvt_pk_bf16_f32 v{16 + 2 * t}, v{acc}, v{acc + 1}
        v_cvt_pk_bf16_f32 v{17 + 2 * t}, v{acc + 2}, v{acc + 3}
        buffer_store_dwordx2 {vr(16 + 2 * t, 2)}, v{V_T0}, {sr(SRD3, 4)}, 0 offen offset:{32 * t} sc1
        """)
    a(f"s_mov_b64 exec, {sr(S_SAVE, 2)}")


def gen_B_role(a):
    DEPTH = 3
    KBUF = [64 + 32 * i for i in range(DEPTH)]
    VBUF = [80 + 32 * i for i in range(DEPTH)]
    WO = [160 + 4 * i for i in range(16)]
    QF = 32
    AT = 48
    V_S = 12
    V_O = 16
    V_PK = 20
    V_L, V_TM, V_M, V_NMC = 24, 25, 26, 27
    V_WOFF, V_OFFK, V_OFFV = 29, 30, 31
    S_CNT = 77
    NT = " nt"
    WAITN = 8 * DEPTH - 4
    stamp(a, 0)
    a(f"""
    s_sub_u32 s{S_T0}, s2, {NA_WG}
    s_and_b32 s{S_T1}, s{S_T0}, 7
    s_lshr_b32 s{S_T2}, s{S_T0}, 3
    s_and_b32 s{S_T3}, s{S_T2}, 3
    s_lshl_b32 s{S_T3}, s{S_T3}, 3
    s_add_u32 s{S_H}, s{S_T1}, s{S_T3}
    s_lshr_b32 s{S_T2}, s{S_T2}, 2
    s_cmp_ge_u32 s{S_T2}, 3
    s_cselect_b32 s{S_B}, 1, 0
    s_mul_i32 s{S_T3}, s{S_B}, 3
    s_sub_u32 s{S_Q}, s{S_T2}, s{S_T3}
    """)
    a(f"""
    s_lshl_b32 s{S_T0}, s{S_B}, 5
    s_add_u32 s{S_T0}, s{S_T0}, s{S_H}
    s_lshl_b32 s{S_T0}, s{S_T0}, 21
    s_mul_i32 s{S_T1}, s{S_Q}, {171 * 4096}
    s_add_u32 s{S_T0}, s{S_T0}, s{S_T1}
    s_lshl_b32 s{S_T1}, s{S_WAVE}, 12
    s_add_u32 s{S_OFF}, s{S_T0}, s{S_T1}
    s_cmp_eq_u32 s{S_Q}, 2
    s_cselect_b32 s{S_T2}, 1, 0
    s_sub_u32 s{S_T2}, 171, s{S_T2}
    s_sub_u32 s{S_T2}, s{S_T2}, s{S_WAVE}
    s_add_u32 s{S_CNT}, s{S_T2}, 7
    s_lshr_b32 s{S_CNT}, s{S_CNT}, 3
    """)
    make_srd(a, SRD0, P_BK, S_OFF, 0)
    make_srd(a, SRD1, P_BV, S_OFF, 0)
    a(f"s_lshl_b32 s{SRD0 + 2}, s{S_T2}, 12\ns_lshl_b32 s{SRD1 + 2}, s{S_T2}, 12")
    make_srd(a, SRD2, P_BX, None, 2048)
    a(f"s_lshl_b32 s{S_OFF}, s{S_H}, 8")
    make_srd(a, SRD3, P_BWQ, S_OFF, 0)
    a(f"s_sub_u32 s{SRD3 + 2}, {512 * 8192}, s{S_OFF}")
    a(f"s_lshl_b32 s{S_OFF}, s{S_H}, 17")
    make_srd(a, SRD4, P_BWO, S_OFF, 131072)
    a(f"""
    v_lshlrev_b32 v{V_OFFK}, 8, v{V_L15}
    v_lshlrev_b32 v{V_T0}, 4, v{V_G}
    v_add_u32 v{V_OFFK}, v{V_OFFK}, v{V_T0}
    v_lshlrev_b32 v{V_OFFV}, 10, v{V_G}
    v_lshlrev_b32 v{V_T0}, 4, v{V_L15}
    v_add_u32 v{V_OFFV}, v{V_OFFV}, v{V_T0}
    """)
    proj_addr(a, V_WOFF)

    def loadK(buf, soff):
        for j in range(4):
            a(f"buffer_load_dwordx4 {vr(buf + 4 * j, 4)}, v{V_OFFV}, {sr(SRD0, 4)}, {soff} offen offset:{256 * j}{NT}")

    def loadV(buf, soff):
        for i in range(4):
            a(f"buffer_load_dwordx4 {vr(buf + 4 * i, 4)}, v{V_OFFV}, {sr(SRD1, 4)}, {soff} offen offset:{256 * i}{NT}")

    def extra():
        a(f"s_mov_b32 s{S_LOOP}, 0")
        for d in range(DEPTH):
            loadK(KBUF[d], f"s{S_LOOP}")
            loadV(VBUF[d], f"s{S_LOOP}")
            a(f"s_add_u32 s{S_LOOP}, s{S_LOOP}, 32768")
        return 8 * DEPTH

    gemv512_phase(a, SRD3, ('global', SRD2), WO, 12, 20, 24, issue_extra=extra)
    for i in range(16):
        proj_load(a, SRD4, V_WOFF, WO, i)
    a(f"""
    v_lshlrev_b32 v{V_T0}, 4, v{V_L15}
    s_lshl_b32 s{S_T0}, s{S_B}, 8
    v_add_u32 v{V_T0}, s{S_T0}, v{V_T0}
    ds_read_b128 {vr(QF, 4)}, v{V_T0} offset:{L_BF2}
    """)
    a(f"""
    v_mov_b32 v{V_L}, 0
    v_mov_b32 v{V_M}, 0xff800000
    v_mov_b32 v{V_NMC}, 0
    v_mov_b32 v{V_O}, 0
    v_mov_b32 v{V_O + 1}, 0
    v_mov_b32 v{V_O + 2}, 0
    v_mov_b32 v{V_O + 3}, 0
    s_waitcnt lgkmcnt(0)
    """)
    rare_blocks = []
    stamp(a, 1)

    def tile(K, V):
        rare = a.new("brare")
        back = a.new("bback")
        a(f"s_waitcnt vmcnt({WAITN})")
        for j in range(4):
            for i in range(4):
                c = "0" if j == 0 else f"v{V_S + i}"
                a(f"v_dot2_f32_bf16 v{V_S + i}, v{K + 4 * i + j}, v{QF + j}, {c}")
        loadK(K, f"s{S_LOOP}")
        for r in (8, 4, 2, 1):
            for i in range(4):
                a(f"v_add_f32_dpp v{V_S + i}, v{V_S + i}, v{V_S + i} row_ror:{r} row_mask:0xf bank_mask:0xf")
        a(f"""
        v_max3_f32 v{V_TM}, v{V_S}, v{V_S + 1}, v{V_S + 2}
        v_max_f32 v{V_TM}, v{V_TM}, v{V_S + 3}
        v_cmp_gt_f32 vcc, v{V_TM}, v{V_M}
        s_cbranch_vccnz {rare}
        """)
        a.label(back)
        for i in range(4):
            a(f"v_fma_f32 v{V_S + i}, v{V_S + i}, s{S_C}, v{V_NMC}")
        for i in range(4):
            a(f"v_exp_f32 v{V_S + i}, v{V_S + i}")
        a("s_nop 0")
        for i in range(4):
            a(f"v_cvt_pk_bf16_f32 v{V_PK + i}, v{V_S + i}, v{V_S + i}")
        a(f"""
        v_add_f32 v{V_S}, v{V_S}, v{V_S + 1}
        v_add_f32 v{V_S + 2}, v{V_S + 2}, v{V_S + 3}
        v_add_f32 v{V_L}, v{V_L}, v{V_S}
        v_add_f32 v{V_L}, v{V_L}, v{V_S + 2}
        """)
        for i in range(4):
            for j in range(4):
                a(f"v_and_b32 v{AT + 4 * i + j}, v{V_PK + i}, v{V_MASK + j}")
        a(f"s_waitcnt vmcnt({WAITN})")
        for i in range(4):
            a(f"v_mfma_f32_16x16x32_bf16 {vr(V_O, 4)}, {vr(AT + 4 * i, 4)}, {vr(V + 4 * i, 4)}, {vr(V_O, 4)}")
        loadV(V, f"s{S_LOOP}")
        a(f"s_add_u32 s{S_LOOP}, s{S_LOOP}, 32768")
        a(f"s_sub_u32 s{S_CNT}, s{S_CNT}, 1\ns_cmp_eq_u32 s{S_CNT}, 0")
        rare_blocks.append((rare, back))

    loop = a.new("bloop")
    done = a.new("bdone")
    a.label(loop)
    for d in range(DEPTH):
        tile(KBUF[d], VBUF[d])
        if d != DEPTH - 1:
            a(f"s_cbranch_scc1 {done}")
        else:
            a(f"s_cbranch_scc0 {loop}")
    a(f"s_branch {done}")
    for rare, back in rare_blocks:
        a.label(rare)
        a(f"""
        v_readlane_b32 s{S_R2}, v{V_TM}, 0
        v_readlane_b32 s{S_R3}, v{V_TM}, 16
        v_readlane_b32 s{S_T4}, v{V_TM}, 32
        v_readlane_b32 s{S_T5}, v{V_TM}, 48
        s_nop 1
        v_max_f32 v{V_TM}, s{S_R2}, v{V_M}
        v_max_f32 v{V_TM}, s{S_R3}, v{V_TM}
        v_max_f32 v{V_TM}, s{S_T4}, v{V_TM}
        v_max_f32 v{V_TM}, s{S_T5}, v{V_TM}
        v_sub_f32 v{V_T0}, v{V_M}, v{V_TM}
        v_mul_f32 v{V_T0}, s{S_C}, v{V_T0}
        v_exp_f32 v{V_T0}, v{V_T0}
        v_mov_b32 v{V_M}, v{V_TM}
        v_mul_f32 v{V_NMC}, s{S_C}, v{V_TM}
        v_sub_f32 v{V_NMC}, 0, v{V_NMC}
        v_mul_f32 v{V_L}, v{V_L}, v{V_T0}
        v_mul_f32 v{V_O}, v{V_O}, v{V_T0}
        v_mul_f32 v{V_O + 1}, v{V_O + 1}, v{V_T0}
        v_mul_f32 v{V_O + 2}, v{V_O + 2}, v{V_T0}
        v_mul_f32 v{V_O + 3}, v{V_O + 3}, v{V_T0}
        s_branch {back}
        """)
    a.label(done)
    a(f"""
    s_nop 7
    v_readlane_b32 s{S_R2}, v{V_L}, 0
    v_readlane_b32 s{S_R3}, v{V_L}, 16
    v_readlane_b32 s{S_T4}, v{V_L}, 32
    v_readlane_b32 s{S_T5}, v{V_L}, 48
    s_nop 1
    v_mov_b32 v{V_L}, s{S_R2}
    v_add_f32 v{V_L}, s{S_R3}, v{V_L}
    v_add_f32 v{V_L}, s{S_T4}, v{V_L}
    v_add_f32 v{V_NMC}, s{S_T5}, v{V_L}
    v_lshlrev_b32 v{V_T0}, 5, v{V_L15}
    v_lshlrev_b32 v{V_T1}, 4, v{V_G}
    v_add_u32 v{V_T0}, v{V_T0}, v{V_T1}
    s_lshl_b32 s{S_T0}, s{S_WAVE}, 9
    v_add_u32 v{V_T0}, s{S_T0}, v{V_T0}
    s_lshl_b32 s{S_T0}, s{S_WAVE}, 3
    v_mov_b32 v{V_T1}, s{S_T0}
    v_cmp_gt_u32 vcc, 32, v{V_LANE}
    s_and_saveexec_b64 {sr(S_SAVE, 2)}, vcc
    ds_write_b128 v{V_T0}, {vr(V_O, 4)} offset:{L_PART}
    ds_write_b64 v{V_T1}, {vr(V_M, 2)} offset:{L_STAT}
    s_mov_b64 exec, {sr(S_SAVE, 2)}
    s_waitcnt lgkmcnt(0)
    s_barrier
    """)
    ST = 32
    a(f"v_mov_b32 v{V_T0}, 0")
    for k in range(4):
        a(f"ds_read_b128 {vr(ST + 4 * k, 4)}, v{V_T0} offset:{L_STAT + 16 * k}")
    a(f"""
    v_and_b32 v{V_T1}, 127, v{V_TID}
    v_lshlrev_b32 v{V_T2}, 2, v{V_T1}
    """)
    for w in range(8):
        a(f"ds_read_b32 v{48 + w}, v{V_T2} offset:{L_PART + 512 * w}")
    a("s_waitcnt lgkmcnt(0)")
    MG = 56
    a(f"""
    v_max3_f32 v{MG}, v{ST}, v{ST + 2}, v{ST + 4}
    v_max3_f32 v{MG}, v{MG}, v{ST + 6}, v{ST + 8}
    v_max3_f32 v{MG}, v{MG}, v{ST + 10}, v{ST + 12}
    v_max_f32 v{MG}, v{MG}, v{ST + 14}
    """)
    for w in range(8):
        a(f"""
        v_sub_f32 v{ST + 2 * w}, v{ST + 2 * w}, v{MG}
        v_mul_f32 v{ST + 2 * w}, s{S_C}, v{ST + 2 * w}
        v_exp_f32 v{ST + 2 * w}, v{ST + 2 * w}
        """)
    LG = 57
    a(f"s_nop 0\nv_mul_f32 v{LG}, v{ST}, v{ST + 1}\nv_mul_f32 v58, v{ST}, v48")
    for w in range(1, 8):
        a(f"v_fmac_f32 v{LG}, v{ST + 2 * w}, v{ST + 2 * w + 1}")
        a(f"v_fmac_f32 v58, v{ST + 2 * w}, v{48 + w}")
    a(f"""
    v_cvt_pk_bf16_f32 v58, v58, v58
    v_lshlrev_b32 v{V_T1}, 1, v{V_T1}
    ds_write_b16 v{V_T1}, v58 offset:{L_BF}
    s_waitcnt lgkmcnt(0) vmcnt(0)
    s_barrier
    """)
    stamp(a, 2)
    proj_compute(a, L_BF, False, WO, 12, 20, 24, waits=False)
    stamp(a, 3)
    a(f"""
    s_lshl_b32 s{S_T0}, s{S_B}, 5
    s_add_u32 s{S_T0}, s{S_T0}, s{S_H}
    s_lshl_b32 s{S_T0}, s{S_T0}, 2
    s_add_u32 s{S_T0}, s{S_T0}, s{S_Q}
    s_lshl_b32 s{S_OFF}, s{S_T0}, 11
    s_add_u32 s{S_OFF}, s{S_OFF}, {WS_YB}
    """)
    make_srd(a, SRD3, P_WS, S_OFF, 2048)
    a(f"""
    s_lshl_b32 s{S_OFF}, s{S_T0}, 3
    s_add_u32 s{S_OFF}, s{S_OFF}, {WS_BSTAT}
    """)
    make_srd(a, SRD4, P_WS, S_OFF, 8)
    a(f"""
    v_lshlrev_b32 v{V_T0}, 2, v{V_TID}
    ds_read_b32 v{V_T1}, v{V_T0} offset:{L_YP}
    ds_read_b32 v{V_T2}, v{V_T0} offset:{L_YP + 4096}
    s_waitcnt lgkmcnt(0)
    v_add_f32 v{V_T1}, v{V_T1}, v{V_T2}
    buffer_store_dword v{V_T1}, v{V_T0}, {sr(SRD3, 4)}, 0 offen
    v_lshlrev_b32 v{V_T0}, 3, v{V_TID}
    buffer_store_dwordx2 {vr(MG, 2)}, v{V_T0}, {sr(SRD4, 4)}, 0 offen
    s_endpgm
    """)


LA_X = 0
LA_S = 65536
LA_T = 73728
LA_ROW = 144
LA_TILE = 32 * LA_ROW
LA_END = LA_T + 8 * 2 * LA_TILE


def stage_attnA(a):
    QF = 160
    ACC = 176
    V_S = 208
    TX = 240
    V_P = 8
    V_WT, V_XW, V_XR, V_TR, V_M = 3, 4, 5, 6, 7
    V_AF = 24
    V_L, V_NMC, V_TM, V_RS = 252, 253, 254, 255
    a(f"s_lshl_b32 s{S_OFF}, s{S_B}, 15")
    make_srd(a, SRD1, P_WS, S_OFF, 32768)
    a(f"""
    v_and_b32 v{V_T0}, 31, v{V_LANE}
    v_lshrrev_b32 v{V_T1}, 5, v{V_LANE}
    v_lshlrev_b32 v{V_T3}, 4, v{V_T1}
    v_lshlrev_b32 v{V_T2}, 10, v{V_T0}
    v_add_u32 v{V_T2}, v{V_T2}, v{V_T3}
    s_lshl_b32 s{S_T0}, s{S_WAVE}, 7
    v_add_u32 v{V_T2}, s{S_T0}, v{V_T2}
    """)
    for kk in range(4):
        a(f"buffer_load_dwordx4 {vr(QF + 4 * kk, 4)}, v{V_T2}, {sr(SRD1, 4)}, 0 offen offset:{32 * kk} sc1")
    a(f"""
    s_mul_i32 s{S_T0}, s{S_WAVE}, {2 * LA_TILE}
    s_add_u32 s{S_T0}, s{S_T0}, {LA_T}
    v_mul_u32_u24 v{V_AF}, {LA_ROW}, v{V_T0}
    v_add_u32 v{V_AF}, v{V_AF}, v{V_T3}
    v_add_u32 v{V_AF}, s{S_T0}, v{V_AF}
    v_lshrrev_b32 v13, 3, v{V_LANE}
    v_mul_u32_u24 v13, {LA_ROW}, v13
    v_and_b32 v14, 7, v{V_LANE}
    v_lshlrev_b32 v14, 4, v14
    v_add_u32 v13, v13, v14
    v_add_u32 v13, s{S_T0}, v13
    v_lshlrev_b32 v14, 4, v{V_LANE}
    s_lshl_b32 s{S_T1}, s{S_WAVE}, 13
    v_add_u32 v15, s{S_T1}, v14
    s_lshr_b32 s{S_T1}, s{S_WAVE}, 1
    s_lshl_b32 s{S_T1}, s{S_T1}, 10
    s_and_b32 s{S_T2}, s{S_WAVE}, 1
    s_lshl_b32 s{S_T2}, s{S_T2}, 3
    s_add_u32 s{S_T1}, s{S_T1}, s{S_T2}
    v_add_u32 v{V_RS}, s{S_T1}, v14
    """)
    a(f"""
    v_lshrrev_b32 v{V_T0}, 1, v{V_G}
    v_lshlrev_b32 v{V_T0}, 2, v{V_T0}
    v_lshrrev_b32 v{V_T1}, 2, v{V_L15}
    v_add_u32 v{V_T0}, v{V_T0}, v{V_T1}
    v_mul_u32_u24 v{V_T0}, {LA_ROW}, v{V_T0}
    v_and_b32 v{V_T1}, 1, v{V_G}
    v_lshlrev_b32 v{V_T1}, 5, v{V_T1}
    v_add_u32 v{V_T0}, v{V_T0}, v{V_T1}
    v_and_b32 v{V_T1}, 3, v{V_L15}
    v_lshlrev_b32 v{V_T1}, 3, v{V_T1}
    v_add_u32 v{V_T0}, v{V_T0}, v{V_T1}
    v_add_u32 v{V_TR}, s{S_T0}, v{V_T0}
    v_mov_b32 v{V_WT}, v13
    v_add_u32 v{V_XR}, {LA_S}, v14
    v_add_u32 v25, {LA_S}, v{V_RS}
    v_mov_b32 v{V_XW}, v15
    v_mov_b32 v{V_M}, 0xff800000
    v_mov_b32 v{V_L}, 0
    v_mov_b32 v{V_NMC}, 0
    """)
    for i in range(32):
        a(f"v_mov_b32 v{ACC + i}, 0")
    a("s_waitcnt vmcnt(0)")
    stamp(a, 6)
    rare_blocks = []

    def rnd(C):
        rare = a.new("arare")
        back = a.new("aback")
        for tl in range(2):
            for kk in range(4):
                a(f"ds_write_b128 v{V_WT}, {vr(C + 16 * tl + 4 * kk, 4)} offset:{tl * LA_TILE + kk * 8 * LA_ROW}")
        a("s_waitcnt lgkmcnt(0)")
        for tl in range(2):
            for kk in range(4):
                a(f"ds_read_b128 {vr(V_P + 4 * kk, 4)}, v{V_AF} offset:{tl * LA_TILE + 32 * kk}")
            for kk in range(4):
                a(f"s_waitcnt lgkmcnt({3 - kk})")
                c = "0" if kk == 0 else vr(V_S + 16 * tl, 16)
                a(f"v_mfma_f32_32x32x16_bf16 {vr(V_S + 16 * tl, 16)}, {vr(V_P + 4 * kk, 4)}, {vr(QF + 4 * kk, 4)}, {c}")
        a("s_nop 7")
        for q in range(4):
            a(f"ds_write_b128 v{V_XW}, {vr(V_S + 4 * q, 4)} offset:{LA_X + q * 1024}")
        a("s_nop 3")
        for q in range(4):
            a(f"ds_write_b128 v{V_XW}, {vr(V_S + 16 + 4 * q, 4)} offset:{LA_X + 4096 + q * 1024}")
        a("s_waitcnt lgkmcnt(0)")
        a("s_barrier")
        for tl in range(2):
            for w in range(8):
                a(f"ds_read_b64 {vr(V_S + 16 * tl + 2 * w, 2)}, v{V_RS} offset:{LA_X + w * 8192 + tl * 4096}")
        for tl in range(2):
            for w in range(1, 8):
                a(f"s_waitcnt lgkmcnt({15 - 8 * tl - w})")
                a(f"v_add_f32 v{V_S + 16 * tl}, v{V_S + 16 * tl}, v{V_S + 16 * tl + 2 * w}")
                a(f"v_add_f32 v{V_S + 16 * tl + 1}, v{V_S + 16 * tl + 1}, v{V_S + 16 * tl + 2 * w + 1}")
        a(f"""
        ds_write_b64 v25, {vr(V_S, 2)}
        ds_write_b64 v25, {vr(V_S + 16, 2)} offset:4096
        s_waitcnt lgkmcnt(0)
        s_barrier
        """)
        for q in range(8):
            a(f"ds_read_b128 {vr(V_S + 4 * q, 4)}, v{V_XR} offset:{q * 1024}")
        units = [(tl, ct, kh) for tl in range(2) for kh in range(2) for ct in range(2)]

        def trread(u):
            tl, ct, kh = units[u]
            t = TX + 4 * (u % 3)
            base = tl * LA_TILE + (kh * 16) * LA_ROW + ct * 64
            a(f"ds_read_b64_tr_b16 {vr(t, 2)}, v{V_TR} offset:{base}")
            a(f"ds_read_b64_tr_b16 {vr(t + 2, 2)}, v{V_TR} offset:{base + 8 * LA_ROW}")
        for u in range(3):
            trread(u)
        a("s_waitcnt lgkmcnt(6)")
        a(f"v_max3_f32 v{V_TM}, v{V_S}, v{V_S + 1}, v{V_S + 2}")
        for k in range(3, 31, 2):
            a(f"v_max3_f32 v{V_TM}, v{V_TM}, v{V_S + k}, v{V_S + k + 1}")
        a(f"""
        v_max_f32 v{V_TM}, v{V_TM}, v{V_S + 31}
        v_cmp_gt_f32 vcc, v{V_TM}, v{V_M}
        s_cbranch_vccnz {rare}
        """)
        a.label(back)
        for i in range(32):
            a(f"v_fma_f32 v{V_S + i}, v{V_S + i}, s{S_C}, v{V_NMC}")
        for i in range(32):
            a(f"v_exp_f32 v{V_S + i}, v{V_S + i}")
        a("s_nop 0")
        for i in range(16):
            a(f"v_cvt_pk_bf16_f32 v{V_P + i}, v{V_S + 2 * i}, v{V_S + 2 * i + 1}")
        a("s_nop 1")
        adds = []
        for st in (1, 2, 4, 8, 16):
            for i in range(0, 32, 2 * st):
                adds.append(f"v_add_f32 v{V_S + i}, v{V_S + i}, v{V_S + i + st}")
        adds.append(f"v_add_f32 v{V_L}, v{V_L}, v{V_S}")
        for u in range(8):
            tl, ct, kh = units[u]
            t = TX + 4 * (u % 3)
            a(f"s_waitcnt lgkmcnt({2 * min(2, 7 - u)})")
            a(f"v_mfma_f32_32x32x16_bf16 {vr(ACC + 16 * ct, 16)}, {vr(t, 4)}, {vr(V_P + 8 * tl + 4 * kh, 4)}, {vr(ACC + 16 * ct, 16)}")
            if u + 3 < 8:
                trread(u + 3)
            for x in adds[4 * u: 4 * u + 4]:
                a(x)
        rare_blocks.append((rare, back))

    for r in range(4):
        rnd(A_C + 32 * r)
        if r == 0:
            stamp(a, 7)
    done = a.new("adone")
    a(f"s_branch {done}")
    for rare, back in rare_blocks:
        a.label(rare)
        a(f"""
        v_mov_b32 v{V_P}, v{V_TM}
        v_mov_b32 v{V_P + 1}, v{V_TM}
        s_nop 1
        v_permlane32_swap_b32 v{V_P}, v{V_P + 1}
        s_nop 1
        v_max3_f32 v{V_TM}, v{V_P}, v{V_P + 1}, v{V_M}
        v_sub_f32 v{V_P}, v{V_M}, v{V_TM}
        v_mul_f32 v{V_P}, s{S_C}, v{V_P}
        v_exp_f32 v{V_P}, v{V_P}
        v_mov_b32 v{V_M}, v{V_TM}
        v_mul_f32 v{V_NMC}, s{S_C}, v{V_TM}
        v_sub_f32 v{V_NMC}, 0, v{V_NMC}
        v_mul_f32 v{V_L}, v{V_L}, v{V_P}
        """)
        for i in range(32):
            a(f"v_mul_f32 v{ACC + i}, v{ACC + i}, v{V_P}")
        a(f"s_branch {back}")
    a.label(done)
    a(f"""
    s_lshl_b32 s{S_T0}, s2, 16
    s_add_u32 s{S_OFF}, s{S_T0}, {WS_APART}
    """)
    make_srd(a, SRD2, P_WS, S_OFF, 65536)
    a(f"""
    s_lshl_b32 s{S_T0}, s{S_B}, 13
    s_lshl_b32 s{S_T1}, s{S_Q}, 3
    s_add_u32 s{S_T0}, s{S_T0}, s{S_T1}
    s_add_u32 s{S_OFF}, s{S_T0}, {WS_ASTAT}
    """)
    make_srd(a, SRD3, P_WS, S_OFF, 8192 - 248)
    a(f"""
    s_mul_i32 s{S_T0}, s{S_WAVE}, {2 * LA_TILE}
    s_add_u32 s{S_T0}, s{S_T0}, {LA_T}
    v_and_b32 v{TX}, 31, v{V_LANE}
    v_lshrrev_b32 v{TX + 1}, 5, v{V_LANE}
    v_mul_u32_u24 v{TX + 2}, 272, v{TX}
    v_lshlrev_b32 v{TX + 1}, 4, v{TX + 1}
    v_add_u32 v{TX + 2}, v{TX + 2}, v{TX + 1}
    v_add_u32 v{TX + 2}, s{S_T0}, v{TX + 2}
    v_lshrrev_b32 v{TX + 3}, 4, v{V_LANE}
    v_and_b32 v{TX + 4}, 15, v{V_LANE}
    v_lshlrev_b32 v{TX + 4}, 4, v{TX + 4}
    v_mul_u32_u24 v{TX + 5}, 272, v{TX + 3}
    v_add_u32 v{TX + 5}, v{TX + 5}, v{TX + 4}
    v_add_u32 v{TX + 5}, s{S_T0}, v{TX + 5}
    v_lshlrev_b32 v{TX + 6}, 11, v{TX + 3}
    v_add_u32 v{TX + 6}, v{TX + 6}, v{TX + 4}
    s_lshl_b32 s{S_T0}, s{S_WAVE}, 8
    v_add_u32 v{TX + 6}, s{S_T0}, v{TX + 6}
    s_nop 7
    s_nop 3
    """)
    for ct in range(2):
        for q4 in range(4):
            a(f"ds_write_b128 v{TX + 2}, {vr(ACC + 16 * ct + 4 * q4, 4)} offset:{ct * 128 + q4 * 32}")
    a("s_waitcnt lgkmcnt(0)")
    for j in range(8):
        a(f"ds_read_b128 {vr(ACC + 4 * j, 4)}, v{TX + 5} offset:{j * 4 * 272}")
    a(f"s_mov_b32 s{S_T0}, 0")
    for j in range(8):
        a(f"s_waitcnt lgkmcnt({7 - j})")
        a(f"buffer_store_dwordx4 {vr(ACC + 4 * j, 4)}, v{TX + 6}, {sr(SRD2, 4)}, s{S_T0} offen sc1")
        if j != 7:
            a(f"s_add_u32 s{S_T0}, s{S_T0}, 8192")
    a(f"""
    v_mov_b32 v{TX + 8}, v{V_L}
    v_mov_b32 v{TX + 9}, v{V_L}
    s_nop 1
    v_permlane32_swap_b32 v{TX + 8}, v{TX + 9}
    s_nop 1
    v_add_f32 v{TX + 11}, v{TX + 8}, v{TX + 9}
    v_mov_b32 v{TX + 10}, v{V_M}
    v_lshlrev_b32 v{TX + 3}, 8, v{V_TID}
    buffer_store_dwordx2 {vr(TX + 10, 2)}, v{TX + 3}, {sr(SRD3, 4)}, 0 offen sc1
    """)


F_WUV = [128 + 4 * i for i in range(16)]
F_WO = [192 + 4 * i for i in range(16)]


def finishA_prefetch(a):
    a(f"""
    s_and_b32 s{S_H}, s2, 31
    s_lshr_b32 s{S_B}, s2, 5
    s_lshl_b32 s{S_OFF}, s{S_H}, 8
    """)
    make_srd(a, SRD2, P_WUV, S_OFF, 0)
    a(f"s_sub_u32 s{SRD2 + 2}, {512 * 8192}, s{S_OFF}")
    a(f"s_lshl_b32 s{S_OFF}, s{S_H}, 17")
    make_srd(a, SRD3, P_AWO, S_OFF, 131072)
    gemv512_wloads(a, SRD2, F_WUV)
    proj_addr(a, 31)
    for i in range(16):
        proj_load(a, SRD3, 31, F_WO, i)


def stage_finishA(a):
    a(f"""
    s_lshl_b32 s{S_T0}, s{S_B}, 21
    s_lshl_b32 s{S_T1}, s{S_H}, 11
    s_add_u32 s{S_T0}, s{S_T0}, s{S_T1}
    s_add_u32 s{S_OFF}, s{S_T0}, {WS_APART}
    """)
    make_srd(a, SRD0, P_WS, S_OFF, 31 * 65536 + 2048)
    a(f"""
    s_lshl_b32 s{S_T0}, s{S_B}, 13
    s_lshl_b32 s{S_T1}, s{S_H}, 8
    s_add_u32 s{S_T0}, s{S_T0}, s{S_T1}
    s_add_u32 s{S_OFF}, s{S_T0}, {WS_ASTAT}
    """)
    make_srd(a, SRD1, P_WS, S_OFF, 256)
    a(f"""
    s_lshl_b32 s{S_T0}, s{S_H}, 12
    s_lshl_b32 s{S_T1}, s{S_B}, 11
    s_add_u32 s{S_T0}, s{S_T0}, s{S_T1}
    s_add_u32 s{S_OFF}, s{S_T0}, {WS_YA}
    """)
    make_srd(a, SRD4, P_WS, S_OFF, 2048)
    STAT = 32
    PART = 96
    a(f"""
    v_lshrrev_b32 v{V_T0}, 7, v{V_TID}
    v_and_b32 v{V_T1}, 127, v{V_TID}
    v_lshlrev_b32 v{V_T2}, 19, v{V_T0}
    v_lshlrev_b32 v{V_T3}, 4, v{V_T1}
    v_add_u32 v{V_T2}, v{V_T2}, v{V_T3}
    v_mov_b32 v{V_T3}, 0
    s_mov_b32 s{S_T0}, 0
    """)
    for k in range(16):
        a(f"buffer_load_dwordx4 {vr(STAT + 4 * k, 4)}, v{V_T3}, {sr(SRD1, 4)}, 0 offen offset:{16 * k} sc1")
    for k in range(8):
        a(f"buffer_load_dwordx4 {vr(PART + 4 * k, 4)}, v{V_T2}, {sr(SRD0, 4)}, s{S_T0} offen sc1")
        if k != 7:
            a(f"s_add_u32 s{S_T0}, s{S_T0}, 65536")
    a("s_waitcnt vmcnt(8)")
    MG, LG = 12, 13
    a(f"v_max_f32 v{MG}, v{STAT}, v{STAT + 2}")
    for k in range(2, 32, 2):
        a(f"v_max3_f32 v{MG}, v{MG}, v{STAT + 2 * k}, v{STAT + 2 * k + 2}")
    for k in range(32):
        a(f"""
        v_sub_f32 v{STAT + 2 * k}, v{STAT + 2 * k}, v{MG}
        v_mul_f32 v{STAT + 2 * k}, s{S_C}, v{STAT + 2 * k}
        v_exp_f32 v{STAT + 2 * k}, v{STAT + 2 * k}
        """)
    a(f"s_nop 0\nv_mul_f32 v{LG}, v{STAT}, v{STAT + 1}")
    for k in range(1, 32):
        a(f"v_fmac_f32 v{LG}, v{STAT + 2 * k}, v{STAT + 2 * k + 1}")
    a(f"v_rcp_f32 v{LG}, v{LG}")
    a(f"s_lshr_b32 s{S_T1}, s{S_WAVE}, 1")
    for g in range(4):
        a(f"s_cmp_eq_u32 s{S_T1}, {g}\ns_cselect_b64 vcc, -1, 0")
        for k in range(8):
            if g == 0:
                a(f"v_mov_b32 v{16 + k}, v{STAT + 2 * k}")
            else:
                a(f"v_cndmask_b32 v{16 + k}, v{16 + k}, v{STAT + 2 * (8 * g + k)}, vcc")
    a("s_waitcnt vmcnt(0)")
    for i in range(4):
        a(f"v_mul_f32 v{24 + i}, v16, v{PART + i}")
    for k in range(1, 8):
        for i in range(4):
            a(f"v_fmac_f32 v{24 + i}, v{16 + k}, v{PART + 4 * k + i}")
    for i in range(4):
        a(f"v_mul_f32 v{24 + i}, v{24 + i}, v{LG}")
    a(f"""
    v_lshlrev_b32 v{V_T0}, 4, v{V_TID}
    ds_write_b128 v{V_T0}, {vr(24, 4)} offset:{L_YP}
    s_waitcnt lgkmcnt(0)
    s_barrier
    v_and_b32 v{V_T1}, 255, v{V_TID}
    v_lshlrev_b32 v{V_T0}, 3, v{V_T1}
    ds_read_b64 {vr(16, 2)}, v{V_T0} offset:{L_YP}
    ds_read_b64 {vr(18, 2)}, v{V_T0} offset:{L_YP + 2048}
    ds_read_b64 {vr(20, 2)}, v{V_T0} offset:{L_YP + 4096}
    ds_read_b64 {vr(22, 2)}, v{V_T0} offset:{L_YP + 6144}
    s_waitcnt lgkmcnt(0)
    v_add_f32 v16, v16, v18
    v_add_f32 v17, v17, v19
    v_add_f32 v20, v20, v22
    v_add_f32 v21, v21, v23
    v_add_f32 v16, v16, v20
    v_add_f32 v17, v17, v21
    v_cvt_pk_bf16_f32 v16, v16, v17
    v_lshlrev_b32 v{V_T0}, 2, v{V_TID}
    ds_write_b32 v{V_T0}, v16 offset:{L_BF}
    s_waitcnt lgkmcnt(0)
    s_barrier
    """)
    gemv512_xload(a, ('lds', L_BF), 16)
    gemv512_compute(a, F_WUV, 16, 24, 28, None)
    proj_compute(a, L_BF2, True, F_WO, 16, 24, 28, waits=False)
    a(f"""
    v_lshlrev_b32 v{V_T0}, 2, v{V_TID}
    ds_read_b32 v12, v{V_T0} offset:{L_YP}
    ds_read_b32 v13, v{V_T0} offset:{L_YP + 4096}
    s_waitcnt lgkmcnt(0)
    v_add_f32 v12, v12, v13
    buffer_store_dword v12, v{V_T0}, {sr(SRD4, 4)}, 0 offen sc1
    """)


def gen_main(a):
    a.raw(".p2align 8")
    a.label("main_kernel")
    a(f"s_cmp_ge_u32 s2, {NA_WG + NB_WG}\ns_cbranch_scc1 L_main_end")
    load_kernargs(a)
    lane_setup(a)
    make_masks(a)
    perm_consts(a)
    a("s_waitcnt lgkmcnt(0)")
    a(f"s_cmp_lt_u32 s2, {NA_WG}\ns_cbranch_scc1 L_main_A")
    if "noB" in EXP:
        a("s_endpgm")
    gen_B_role(a)
    a.label("L_main_A")
    if "noA" in EXP:
        a("s_endpgm")
    make_srd(a, SRD_DBG, P_DBG, None, 256)
    stamp(a, 0)
    stage_prepA(a)
    stamp(a, 1)
    sync_arrive(a, 0)
    attnA_preload(a)
    sync_wait(a, 0, NA_WG)
    stamp(a, 2)
    stage_attnA(a)
    stamp(a, 3)
    sync_arrive(a, 128)
    lane_setup(a)
    make_masks(a)
    finishA_prefetch(a)
    sync_wait(a, 128, NA_WG)
    stamp(a, 4)
    stage_finishA(a)
    stamp(a, 5)
    a.label("L_main_end")
    a("s_endpgm")


def gen_final(a):
    a.raw(".p2align 8")
    a.label("final_kernel")
    a("s_cmp_ge_u32 s2, 32\ns_cbranch_scc1 L_final_end")
    load_kernargs(a)
    lane_setup(a)
    a("s_waitcnt lgkmcnt(0)")
    a(f"""
    s_and_b32 s{S_Q}, s2, 7
    s_lshr_b32 s{S_B}, s2, 3
    s_and_b32 s{S_B}, s{S_B}, 1
    """)
    make_srd(a, SRD4, P_OUT, None, 4096)
    ACC = 12
    a("s_cmp_ge_u32 s2, 16\ns_cbranch_scc1 L_final_B")
    make_srd_imm(a, SRD0, P_WS, WS_YA, 32 * 4096)
    a(f"""
    s_lshl_b32 s{S_T0}, s{S_B}, 11
    s_lshl_b32 s{S_T1}, s{S_Q}, 8
    s_add_u32 s{S_T0}, s{S_T0}, s{S_T1}
    s_lshl_b32 s{S_T1}, s{S_WAVE}, 14
    s_add_u32 s{S_T0}, s{S_T0}, s{S_T1}
    v_lshlrev_b32 v{V_T0}, 2, v{V_LANE}
    v_add_u32 v{V_T0}, s{S_T0}, v{V_T0}
    s_mov_b32 s{S_T1}, 4096
    s_mov_b32 s{S_T2}, 8192
    s_mov_b32 s{S_T3}, 12288
    buffer_load_dword v16, v{V_T0}, {sr(SRD0, 4)}, 0 offen
    buffer_load_dword v17, v{V_T0}, {sr(SRD0, 4)}, s{S_T1} offen
    buffer_load_dword v18, v{V_T0}, {sr(SRD0, 4)}, s{S_T2} offen
    buffer_load_dword v19, v{V_T0}, {sr(SRD0, 4)}, s{S_T3} offen
    s_waitcnt vmcnt(0)
    v_add_f32 v16, v16, v17
    v_add_f32 v18, v18, v19
    v_add_f32 v{ACC}, v16, v18
    s_mov_b32 s{S_T5}, 0
    s_branch L_final_red
    """)
    a.label("L_final_B")
    make_srd_imm(a, SRD0, P_WS, WS_YB, 2 * 32 * 4 * 2048)
    make_srd_imm(a, SRD1, P_WS, WS_BSTAT, 2 * 32 * 32)
    a(f"""
    s_lshl_b32 s{S_T0}, s{S_B}, 5
    s_lshl_b32 s{S_T1}, s{S_WAVE}, 2
    s_add_u32 s{S_T0}, s{S_T0}, s{S_T1}
    s_lshl_b32 s{S_T1}, s{S_T0}, 13
    s_lshl_b32 s{S_T2}, s{S_Q}, 8
    s_add_u32 s{S_T1}, s{S_T1}, s{S_T2}
    v_lshlrev_b32 v{V_T0}, 2, v{V_LANE}
    v_add_u32 v{V_T0}, s{S_T1}, v{V_T0}
    s_lshl_b32 s{S_T1}, s{S_T0}, 5
    v_mov_b32 v{V_T1}, s{S_T1}
    """)
    ST = 32
    Y = 64
    for k in range(4):
        a(f"buffer_load_dwordx4 {vr(ST + 8 * k, 4)}, v{V_T1}, {sr(SRD1, 4)}, 0 offen offset:{32 * k}")
        a(f"buffer_load_dwordx4 {vr(ST + 8 * k + 4, 4)}, v{V_T1}, {sr(SRD1, 4)}, 0 offen offset:{32 * k + 16}")
    a(f"s_mov_b32 s{S_T1}, 0")
    for k in range(4):
        for s in range(3):
            a(f"buffer_load_dword v{Y + 4 * k + s}, v{V_T0}, {sr(SRD0, 4)}, s{S_T1} offen")
            if not (k == 3 and s == 2):
                a(f"s_add_u32 s{S_T1}, s{S_T1}, {2048 if s != 2 else 4096}")
    a(f"s_waitcnt vmcnt(0)\nv_mov_b32 v{ACC}, 0")
    for k in range(4):
        b = ST + 8 * k
        a(f"""
        v_max3_f32 v16, v{b}, v{b + 2}, v{b + 4}
        """)
        for s in range(3):
            a(f"""
            v_sub_f32 v{b + 2 * s}, v{b + 2 * s}, v16
            v_mul_f32 v{b + 2 * s}, s{S_C}, v{b + 2 * s}
            v_exp_f32 v{b + 2 * s}, v{b + 2 * s}
            """)
        a(f"s_nop 0\nv_mul_f32 v17, v{b}, v{b + 1}\nv_mul_f32 v18, v{b}, v{Y + 4 * k}")
        for s in range(1, 3):
            a(f"v_fmac_f32 v17, v{b + 2 * s}, v{b + 2 * s + 1}\nv_fmac_f32 v18, v{b + 2 * s}, v{Y + 4 * k + s}")
        a(f"v_rcp_f32 v17, v17\ns_nop 0\nv_fmac_f32 v{ACC}, v18, v17")
    a(f"s_mov_b32 s{S_T5}, 1024")
    a.label("L_final_red")
    a(f"""
    v_lshlrev_b32 v{V_T0}, 2, v{V_TID}
    ds_write_b32 v{V_T0}, v{ACC}
    s_waitcnt lgkmcnt(0)
    s_barrier
    s_cmp_lg_u32 s{S_WAVE}, 0
    s_cbranch_scc1 L_final_end
    """)
    for w in range(8):
        a(f"ds_read_b32 v{16 + w}, v{V_T0} offset:{256 * w}")
    a("s_waitcnt lgkmcnt(0)")
    for w in range(1, 8):
        a(f"v_add_f32 v16, v16, v{16 + w}")
    a(f"""
    v_cvt_pk_bf16_f32 v16, v16, v16
    s_lshl_b32 s{S_T0}, s{S_B}, 11
    s_lshl_b32 s{S_T1}, s{S_Q}, 7
    s_add_u32 s{S_T0}, s{S_T0}, s{S_T1}
    s_add_u32 s{S_T0}, s{S_T0}, s{S_T5}
    v_lshlrev_b32 v{V_T0}, 1, v{V_LANE}
    buffer_store_short v16, v{V_T0}, {sr(SRD4, 4)}, s{S_T0} offen
    """)
    a.label("L_final_end")
    a("s_endpgm")


def descriptor(name, vgpr):
    return f"""
.amdhsa_kernel {name}
  .amdhsa_next_free_vgpr {vgpr}
  .amdhsa_next_free_sgpr 100
  .amdhsa_accum_offset {(vgpr + 3) // 4 * 4}
  .amdhsa_group_segment_fixed_size 0
  .amdhsa_kernarg_size 112
  .amdhsa_user_sgpr_count 2
  .amdhsa_user_sgpr_kernarg_segment_ptr 1
  .amdhsa_system_sgpr_workgroup_id_x 1
.end_amdhsa_kernel
"""


def main():
    a = Asm()
    gen_main(a)
    gen_final(a)
    launches = [
        ("main_kernel", NA_WG + NB_WG, LA_END),
        ("final_kernel", 32, 2048),
    ]
    txt = HEADER
    for k, g, lds in launches:
        txt += f"; @launch kernel={k} grid=({g},1,1) block=(512,1,1) lds={lds}\n"
    txt += '.amdgcn_target "amdgcn-amd-amdhsa--gfx950"\n.text\n'
    for k, _, _ in launches:
        txt += f".globl {k}\n.type {k},@function\n"
    txt += a.text()
    txt += '.section .rodata,"a"\n.p2align 6\n'
    for k, _, _ in launches:
        txt += ".p2align 6\n" + descriptor(k, NVGPR if k == 'main_kernel' else 128)
    open(OUT, "w").write(txt)
    print("wrote", OUT, len(txt))


if __name__ == "__main__":
    main()
```

```python
import os
import struct
import sys

EXP = os.environ.get("EXP", "")

NAME = "concat_heads__compressed_kv_cla__mha_block_cached__decode"
OUT = os.environ.get("OUTS", f"cdna_kernels/{NAME}.s")

KNAME = NAME + "_kernel"
HEADER = """; Kernarg layout for this problem (112 bytes, ptrs only, base s[0:1]):
"""


def f32bits(x):
    return struct.unpack("<I", struct.pack("<f", x))[0]


import math
CSCALE = (128 ** -0.5) * math.log2(math.e)

NSA = 32
WS_QP = 0
WS_APART = 0x10000
WS_ASTAT = WS_APART + 2 * NSA * 32 * 512 * 4
WS_YA = WS_ASTAT + 0x10000
WS_YB = WS_YA + 32 * 2 * 512 * 4
WS_BSTAT = WS_YB + 2 * 32 * 4 * 512 * 4
WS_END = WS_BSTAT + 0x10000

NA_WG = 2 * NSA
NB_WG = 192
NVGPR = 256


class Asm:
    def __init__(self):
        self.lines = []
        self.uid = 0

    def __call__(self, s):
        for ln in s.strip("\n").split("\n"):
            ln = ln.strip()
            if ln:
                self.lines.append("    " + ln)

    def label(self, l):
        self.lines.append(l + ":")

    def new(self, base):
        self.uid += 1
        return f"L_{base}_{self.uid}"

    def raw(self, s):
        self.lines.append(s)

    def text(self):
        return "\n".join(self.lines) + "\n"


def vr(a, n):
    return f"v[{a}:{a + n - 1}]"


def sr(a, n):
    return f"s[{a}:{a + n - 1}]"


P_AX, P_CKV, P_AWQ, P_WUK, P_WUV, P_AWO, P_BX, P_BK = 16, 18, 20, 22, 24, 26, 28, 30
P_BV, P_BWQ, P_BWO, P_OUT = 32, 34, 36, 38
P_DBG, P_WS = 40, 42
SRD0, SRD1, SRD2, SRD3, SRD4 = 44, 48, 52, 56, 60
S_WAVE = 64
S_C = 65
S_T0, S_T1, S_T2, S_T3, S_T4, S_T5 = 66, 67, 68, 69, 70, 71
S_H, S_B, S_Q = 72, 73, 74
S_LOOP = 75
S_OFF = 76
S_SAVE = 78
S_R0, S_R1, S_R2, S_R3 = 80, 81, 82, 83

V_TID = 0
V_LANE = 1
V_L15 = 2
V_G = 3
V_MASK = 4
V_T0, V_T1, V_T2, V_T3 = 8, 9, 10, 11


def load_kernargs(a):
    a(f"""
    s_load_dwordx16 {sr(16, 16)}, s[0:1], 0
    s_load_dwordx8 {sr(32, 8)}, s[0:1], 64
    s_load_dwordx4 {sr(40, 4)}, s[0:1], 96
    """)


def lane_setup(a):
    a(f"""
    v_and_b32 v{V_LANE}, 63, v{V_TID}
    v_lshrrev_b32 v{V_T0}, 6, v{V_TID}
    v_and_b32 v{V_L15}, 15, v{V_LANE}
    v_readfirstlane_b32 s{S_WAVE}, v{V_T0}
    v_lshrrev_b32 v{V_G}, 4, v{V_LANE}
    s_mov_b32 s{S_C}, {f32bits(CSCALE):#x}
    """)


def make_masks(a):
    a(f"""
    v_and_b32 v{V_T0}, 7, v{V_LANE}
    v_lshrrev_b32 v{V_T1}, 1, v{V_T0}
    v_and_b32 v{V_T0}, 1, v{V_T0}
    v_lshlrev_b32 v{V_T0}, 4, v{V_T0}
    v_mov_b32 v{V_T2}, 0xffff
    v_lshlrev_b32 v{V_T2}, v{V_T0}, v{V_T2}
    """)
    for j in range(4):
        a(f"""
        v_cmp_eq_u32 vcc, {j}, v{V_T1}
        s_nop 1
        v_cndmask_b32 v{V_MASK + j}, 0, v{V_T2}, vcc
        """)


def make_srd(a, srd, ptr, off_sgpr, nbytes):
    if off_sgpr is None:
        a(f"s_mov_b32 s{srd}, s{ptr}\ns_mov_b32 s{srd + 1}, s{ptr + 1}")
    else:
        a(f"s_add_u32 s{srd}, s{ptr}, s{off_sgpr}\ns_addc_u32 s{srd + 1}, s{ptr + 1}, 0")
    a(f"s_mov_b32 s{srd + 2}, {nbytes:#x}\ns_mov_b32 s{srd + 3}, 0x00020000")


def make_srd_imm(a, srd, ptr, off, nbytes):
    a(f"s_add_u32 s{srd}, s{ptr}, {off:#x}\ns_addc_u32 s{srd + 1}, s{ptr + 1}, 0")
    a(f"s_mov_b32 s{srd + 2}, {nbytes:#x}\ns_mov_b32 s{srd + 3}, 0x00020000")


def delta_mfma(a, xregs, i, data, acc, tmp, first=False):
    sel = S_R0 if (i & 1) == 0 else S_R1
    a(f"v_perm_b32 v{tmp + 4}, v{xregs + (i >> 1)}, v{xregs + (i >> 1)}, s{sel}")
    for j in range(4):
        a(f"v_and_b32 v{tmp + j}, v{tmp + 4}, v{V_MASK + j}")
    a("s_nop 1")
    c = "0" if first else vr(acc, 4)
    a(f"v_mfma_f32_16x16x32_bf16 {vr(acc, 4)}, {vr(tmp, 4)}, {vr(data, 4)}, {c}")


def perm_consts(a):
    a(f"s_mov_b32 s{S_R0}, 0x01000100\ns_mov_b32 s{S_R1}, 0x03020302")


L_PART = 0
L_BF = 8192
L_BF2 = 10240
L_STAT = 11264
L_YP = 12288
L_END_SMALL = 20480


def gemv512_xload(a, xsrc, xregs):
    a(f"""
    v_lshrrev_b32 v{V_T0}, 3, v{V_L15}
    v_lshlrev_b32 v{V_T0}, 10, v{V_T0}
    v_lshlrev_b32 v{V_T1}, 5, v{V_G}
    v_add_u32 v{V_T0}, v{V_T0}, v{V_T1}
    s_lshl_b32 s{S_T0}, s{S_WAVE}, 7
    v_add_u32 v{V_T0}, s{S_T0}, v{V_T0}
    """)
    if xsrc[0] == 'global':
        a(f"""
        buffer_load_dwordx4 {vr(xregs, 4)}, v{V_T0}, {sr(xsrc[1], 4)}, 0 offen
        buffer_load_dwordx4 {vr(xregs + 4, 4)}, v{V_T0}, {sr(xsrc[1], 4)}, 0 offen offset:16
        """)
    else:
        a(f"""
        ds_read_b128 {vr(xregs, 4)}, v{V_T0} offset:{xsrc[1]}
        ds_read_b128 {vr(xregs + 4, 4)}, v{V_T0} offset:{xsrc[1] + 16}
        s_waitcnt lgkmcnt(0)
        """)


def gemv512_wloads(a, srd_w, wbuf):
    a(f"""
    v_lshlrev_b32 v{V_T1}, 17, v{V_G}
    v_lshlrev_b32 v{V_T2}, 4, v{V_L15}
    v_add_u32 v{V_T1}, v{V_T1}, v{V_T2}
    s_lshl_b32 s{S_T0}, s{S_WAVE}, 19
    """)
    for i in range(16):
        a(f"buffer_load_dwordx4 {vr(wbuf[i], 4)}, v{V_T1}, {sr(srd_w, 4)}, s{S_T0} offen")
        if i != 15:
            a(f"s_add_u32 s{S_T0}, s{S_T0}, 8192")


def gemv512_compute(a, wbuf, xregs, acc, tmp, nyounger):
    for i in range(16):
        if nyounger is not None:
            a(f"s_waitcnt vmcnt({15 - i + nyounger})")
        delta_mfma(a, xregs, i, wbuf[i], acc, tmp, first=(i == 0))
    a(f"""
    v_lshrrev_b32 v{V_T0}, 1, v{V_G}
    v_lshlrev_b32 v{V_T0}, 9, v{V_T0}
    v_lshlrev_b32 v{V_T1}, 5, v{V_L15}
    v_add_u32 v{V_T0}, v{V_T0}, v{V_T1}
    v_and_b32 v{V_T1}, 1, v{V_G}
    v_lshlrev_b32 v{V_T1}, 4, v{V_T1}
    v_add_u32 v{V_T0}, v{V_T0}, v{V_T1}
    s_lshl_b32 s{S_T0}, s{S_WAVE}, 10
    v_add_u32 v{V_T0}, s{S_T0}, v{V_T0}
    s_nop 7
    ds_write_b128 v{V_T0}, {vr(acc, 4)} offset:{L_PART}
    s_waitcnt lgkmcnt(0)
    s_barrier
    """)
    a(f"""
    v_and_b32 v{V_T0}, 255, v{V_TID}
    v_lshlrev_b32 v{V_T1}, 2, v{V_T0}
    """)
    for w in range(8):
        a(f"ds_read_b32 v{xregs + w}, v{V_T1} offset:{L_PART + w * 1024}")
    a("s_waitcnt lgkmcnt(0)")
    for w in range(1, 8):
        a(f"v_add_f32 v{xregs}, v{xregs}, v{xregs + w}")
    a(f"""
    v_cvt_pk_bf16_f32 v{xregs}, v{xregs}, v{xregs}
    v_lshlrev_b32 v{V_T1}, 1, v{V_T0}
    ds_write_b16 v{V_T1}, v{xregs} offset:{L_BF2}
    s_waitcnt lgkmcnt(0)
    s_barrier
    """)


def gemv512_phase(a, srd_w, xsrc, wbuf, xregs, acc, tmp, issue_extra=None):
    gemv512_xload(a, xsrc, xregs)
    gemv512_wloads(a, srd_w, wbuf)
    nextra = issue_extra() if issue_extra is not None else 0
    gemv512_compute(a, wbuf, xregs, acc, tmp, nextra)


S_PW = 88


def proj_addr(a, v_off):
    a(f"""
    s_and_b32 s{S_T1}, s{S_WAVE}, 3
    s_lshr_b32 s{S_T2}, s{S_WAVE}, 2
    v_lshlrev_b32 v{v_off}, 14, v{V_G}
    v_lshlrev_b32 v{V_T2}, 4, v{V_L15}
    v_add_u32 v{v_off}, v{v_off}, v{V_T2}
    s_lshl_b32 s{S_PW}, s{S_T2}, 16
    s_lshl_b32 s{S_T3}, s{S_T1}, 8
    s_add_u32 s{S_PW}, s{S_PW}, s{S_T3}
    s_add_u32 s{S_PW + 1}, s{S_PW}, 4096
    s_add_u32 s{S_PW + 2}, s{S_PW}, 8192
    s_add_u32 s{S_PW + 3}, s{S_PW}, 12288
    """)


def proj_load(a, srd_w, v_off, wbuf, i):
    a(f"buffer_load_dwordx4 {vr(wbuf[i], 4)}, v{v_off}, {sr(srd_w, 4)}, s{S_PW + (i >> 2)} offen offset:{(i & 3) * 1024}")


def proj_compute(a, xlds, two_b, wbuf, xregs, acc, tmp, waits=True):
    a(f"""
    s_and_b32 s{S_T1}, s{S_WAVE}, 3
    s_lshr_b32 s{S_T2}, s{S_WAVE}, 2
    v_lshlrev_b32 v{V_T0}, 5, v{V_G}
    s_lshl_b32 s{S_T0}, s{S_T2}, 7
    v_add_u32 v{V_T0}, s{S_T0}, v{V_T0}
    """)
    if two_b:
        a(f"""
        v_lshrrev_b32 v{V_T1}, 3, v{V_L15}
        v_lshlrev_b32 v{V_T1}, 8, v{V_T1}
        v_add_u32 v{V_T0}, v{V_T0}, v{V_T1}
        """)
    a(f"""
    ds_read_b128 {vr(xregs, 4)}, v{V_T0} offset:{xlds}
    ds_read_b128 {vr(xregs + 4, 4)}, v{V_T0} offset:{xlds + 16}
    s_waitcnt lgkmcnt(0)
    """)
    for i in range(16):
        if waits:
            a(f"s_waitcnt vmcnt({15 - i})")
        delta_mfma(a, xregs, i, wbuf[i], acc, tmp, first=(i == 0))
    a(f"""
    v_lshrrev_b32 v{V_T0}, 1, v{V_G}
    v_lshlrev_b32 v{V_T0}, 11, v{V_T0}
    v_lshlrev_b32 v{V_T1}, 5, v{V_L15}
    v_add_u32 v{V_T0}, v{V_T0}, v{V_T1}
    v_and_b32 v{V_T1}, 1, v{V_G}
    v_lshlrev_b32 v{V_T1}, 4, v{V_T1}
    v_add_u32 v{V_T0}, v{V_T0}, v{V_T1}
    s_lshl_b32 s{S_T0}, s{S_T2}, 12
    s_lshl_b32 s{S_T3}, s{S_T1}, 9
    s_add_u32 s{S_T0}, s{S_T0}, s{S_T3}
    v_add_u32 v{V_T0}, s{S_T0}, v{V_T0}
    s_nop 7
    ds_write_b128 v{V_T0}, {vr(acc, 4)} offset:{L_YP}
    s_waitcnt lgkmcnt(0)
    s_barrier
    """)


def stamp(a, slot, wg=None):
    if "stamp" not in EXP:
        return
    skip = a.new("stamp")
    a(f"""
    s_cmp_lg_u32 s{S_WAVE}, 0
    s_cbranch_scc1 {skip}
    s_memrealtime s[92:93]
    s_lshl_b32 s94, s2, 5
    s_add_u32 s94, s94, {WS_END}
    s_add_u32 s96, s{P_WS}, s94
    s_addc_u32 s97, s{P_WS + 1}, 0
    s_mov_b32 s98, 32
    s_mov_b32 s99, 0x00020000
    s_waitcnt lgkmcnt(0)
    v_mov_b32 v10, s92
    v_mov_b32 v11, 0
    buffer_store_dword v10, v11, s[96:99], 0 offen offset:{slot * 4}
    """)
    a.label(skip)


SRD_DBG = 84
V_SY0, V_SY1 = 8, 9


def sync_arrive(a, cnt_off):
    skip = a.new("arr_skip")
    a(f"""
    s_waitcnt vmcnt(0) lgkmcnt(0)
    s_barrier
    s_cmp_lg_u32 s{S_WAVE}, 0
    s_cbranch_scc1 {skip}
    v_mov_b32 v{V_SY0}, 1
    v_mov_b32 v{V_SY1}, 0
    s_mov_b64 exec, 1
    buffer_atomic_add v{V_SY0}, v{V_SY1}, {sr(SRD_DBG, 4)}, 0 offen offset:{cnt_off}
    s_mov_b64 exec, -1
    """)
    a.label(skip)


def sync_wait(a, cnt_off, target):
    skip = a.new("sync_skip")
    poll = a.new("sync_poll")
    done = a.new("sync_done")
    a(f"""
    s_cmp_lg_u32 s{S_WAVE}, 0
    s_cbranch_scc1 {skip}
    v_mov_b32 v{V_SY1}, 0
    s_mov_b32 s{S_T5}, 0
    """)
    a.label(poll)
    a(f"""
    buffer_load_dword v{V_SY0}, v{V_SY1}, {sr(SRD_DBG, 4)}, 0 offen offset:{cnt_off} sc1
    s_add_u32 s{S_T5}, s{S_T5}, 1
    s_waitcnt vmcnt(0)
    v_readfirstlane_b32 s{S_T4}, v{V_SY0}
    s_cmp_ge_u32 s{S_T5}, 0x40000
    s_cbranch_scc1 {done}
    s_cmp_ge_u32 s{S_T4}, {target}
    s_cbranch_scc1 {done}
    s_sleep 1
    s_branch {poll}
    """)
    a.label(done)
    a.label(skip)
    a("s_barrier")


A_C = 32


def attnA_preload(a):
    a(f"""
    s_lshr_b32 s{S_B}, s2, 5
    s_and_b32 s{S_Q}, s2, 31
    s_lshl_b32 s{S_T0}, s{S_B}, 23
    s_lshl_b32 s{S_T1}, s{S_Q}, 18
    s_add_u32 s{S_OFF}, s{S_T0}, s{S_T1}
    """)
    make_srd(a, SRD4, P_CKV, S_OFF, 256 * 1024)
    a(f"""
    v_and_b32 v{V_T0}, 7, v{V_LANE}
    v_lshrrev_b32 v{V_T1}, 3, v{V_LANE}
    v_lshlrev_b32 v{V_T2}, 10, v{V_T1}
    v_lshlrev_b32 v{V_T3}, 4, v{V_T0}
    v_add_u32 v{V_T2}, v{V_T2}, v{V_T3}
    s_lshl_b32 s{S_T0}, s{S_WAVE}, 7
    v_add_u32 v31, s{S_T0}, v{V_T2}
    s_mov_b32 s{S_T0}, 0
    """)
    for t in range(8):
        for kk in range(4):
            a(f"buffer_load_dwordx4 {vr(A_C + 16 * t + 4 * kk, 4)}, v31, {sr(SRD4, 4)}, s{S_T0} offen nt")
            if not (t == 7 and kk == 3):
                a(f"s_add_u32 s{S_T0}, s{S_T0}, 8192")
    return 32


def stage_prepA(a):
    a(f"""
    s_lshr_b32 s{S_H}, s2, 1
    s_lshl_b32 s{S_OFF}, s{S_H}, 8
    """)
    make_srd(a, SRD0, P_AX, None, 2048)
    make_srd(a, SRD1, P_AWQ, S_OFF, 0)
    a(f"s_sub_u32 s{SRD1 + 2}, {512 * 8192}, s{S_OFF}")
    make_srd(a, SRD2, P_WUK, S_OFF, 0)
    a(f"s_sub_u32 s{SRD2 + 2}, {512 * 8192}, s{S_OFF}")
    make_srd_imm(a, SRD3, P_WS, WS_QP, 65536)
    wbuf = [160 + 4 * i for i in range(16)]
    ubuf = [224 + 4 * i for i in range(8)]
    QF = 160
    ACC = 176

    def extra():
        a(f"""
        v_lshlrev_b32 v30, 13, v{V_L15}
        v_lshlrev_b32 v{V_T2}, 4, v{V_G}
        v_add_u32 v30, v30, v{V_T2}
        s_and_b32 s{S_T1}, s2, 1
        s_lshl_b32 s{S_T1}, s{S_T1}, 21
        s_lshl_b32 s{S_T2}, s{S_WAVE}, 18
        s_add_u32 s{S_T1}, s{S_T1}, s{S_T2}
        s_add_u32 s{S_T2}, s{S_T1}, {16 * 8192}
        """)
        for t in range(2):
            for j in range(4):
                a(f"buffer_load_dwordx4 {vr(ubuf[t * 4 + j], 4)}, v30, {sr(SRD2, 4)}, s{S_T1 + t} offen offset:{64 * j}")
        return 8

    gemv512_phase(a, SRD1, ('global', SRD0), wbuf, 12, 20, 24, issue_extra=extra)
    a(f"""
    v_and_b32 v{V_T0}, 1, v{V_L15}
    v_lshlrev_b32 v{V_T0}, 8, v{V_T0}
    v_lshlrev_b32 v{V_T1}, 4, v{V_G}
    v_add_u32 v{V_T0}, v{V_T0}, v{V_T1}
    """)
    for j in range(4):
        a(f"ds_read_b128 {vr(QF + 4 * j, 4)}, v{V_T0} offset:{L_BF2 + 64 * j}")
    a(f"""
    v_lshlrev_b32 v{V_T0}, 15, v{V_L15}
    v_lshlrev_b32 v{V_T2}, 3, v{V_G}
    v_add_u32 v{V_T0}, v{V_T0}, v{V_T2}
    s_lshl_b32 s{S_T0}, s2, 9
    s_lshl_b32 s{S_T1}, s{S_WAVE}, 6
    s_add_u32 s{S_T0}, s{S_T0}, s{S_T1}
    v_add_u32 v{V_T0}, s{S_T0}, v{V_T0}
    s_waitcnt lgkmcnt(0) vmcnt(0)
    """)
    for t in range(2):
        acc = ACC + 4 * t
        for j in range(4):
            c = "0" if j == 0 else vr(acc, 4)
            a(f"v_mfma_f32_16x16x32_bf16 {vr(acc, 4)}, {vr(ubuf[t * 4 + j], 4)}, {vr(QF + 4 * j, 4)}, {c}")
    a("s_nop 7\ns_nop 3")
    a(f"v_cmp_gt_u32 vcc, 2, v{V_L15}\ns_and_saveexec_b64 {sr(S_SAVE, 2)}, vcc")
    for t in range(2):
        acc = ACC + 4 * t
        a(f"""
        v_cvt_pk_bf16_f32 v{16 + 2 * t}, v{acc}, v{acc + 1}
        v_cvt_pk_bf16_f32 v{17 + 2 * t}, v{acc + 2}, v{acc + 3}
        buffer_store_dwordx2 {vr(16 + 2 * t, 2)}, v{V_T0}, {sr(SRD3, 4)}, 0 offen offset:{32 * t} sc1
        """)
    a(f"s_mov_b64 exec, {sr(S_SAVE, 2)}")


def gen_B_role(a):
    DEPTH = 3
    KBUF = [64 + 32 * i for i in range(DEPTH)]
    VBUF = [80 + 32 * i for i in range(DEPTH)]
    WO = [160 + 4 * i for i in range(16)]
    QF = 32
    AT = 48
    V_S = 12
    V_O = 16
    V_PK = 20
    V_L, V_TM, V_M, V_NMC = 24, 25, 26, 27
    V_WOFF, V_OFFK, V_OFFV = 29, 30, 31
    S_CNT = 77
    NT = " nt"
    WAITN = 8 * DEPTH - 4
    stamp(a, 0)
    a(f"""
    s_sub_u32 s{S_T0}, s2, {NA_WG}
    s_and_b32 s{S_T1}, s{S_T0}, 7
    s_lshr_b32 s{S_T2}, s{S_T0}, 3
    s_and_b32 s{S_T3}, s{S_T2}, 3
    s_lshl_b32 s{S_T3}, s{S_T3}, 3
    s_add_u32 s{S_H}, s{S_T1}, s{S_T3}
    s_lshr_b32 s{S_T2}, s{S_T2}, 2
    s_cmp_ge_u32 s{S_T2}, 3
    s_cselect_b32 s{S_B}, 1, 0
    s_mul_i32 s{S_T3}, s{S_B}, 3
    s_sub_u32 s{S_Q}, s{S_T2}, s{S_T3}
    """)
    a(f"""
    s_lshl_b32 s{S_T0}, s{S_B}, 5
    s_add_u32 s{S_T0}, s{S_T0}, s{S_H}
    s_lshl_b32 s{S_T0}, s{S_T0}, 21
    s_mul_i32 s{S_T1}, s{S_Q}, {171 * 4096}
    s_add_u32 s{S_T0}, s{S_T0}, s{S_T1}
    s_lshl_b32 s{S_T1}, s{S_WAVE}, 12
    s_add_u32 s{S_OFF}, s{S_T0}, s{S_T1}
    s_cmp_eq_u32 s{S_Q}, 2
    s_cselect_b32 s{S_T2}, 1, 0
    s_sub_u32 s{S_T2}, 171, s{S_T2}
    s_sub_u32 s{S_T2}, s{S_T2}, s{S_WAVE}
    s_add_u32 s{S_CNT}, s{S_T2}, 7
    s_lshr_b32 s{S_CNT}, s{S_CNT}, 3
    """)
    make_srd(a, SRD0, P_BK, S_OFF, 0)
    make_srd(a, SRD1, P_BV, S_OFF, 0)
    a(f"s_lshl_b32 s{SRD0 + 2}, s{S_T2}, 12\ns_lshl_b32 s{SRD1 + 2}, s{S_T2}, 12")
    make_srd(a, SRD2, P_BX, None, 2048)
    a(f"s_lshl_b32 s{S_OFF}, s{S_H}, 8")
    make_srd(a, SRD3, P_BWQ, S_OFF, 0)
    a(f"s_sub_u32 s{SRD3 + 2}, {512 * 8192}, s{S_OFF}")
    a(f"s_lshl_b32 s{S_OFF}, s{S_H}, 17")
    make_srd(a, SRD4, P_BWO, S_OFF, 131072)
    a(f"""
    v_lshlrev_b32 v{V_OFFK}, 8, v{V_L15}
    v_lshlrev_b32 v{V_T0}, 4, v{V_G}
    v_add_u32 v{V_OFFK}, v{V_OFFK}, v{V_T0}
    v_lshlrev_b32 v{V_OFFV}, 10, v{V_G}
    v_lshlrev_b32 v{V_T0}, 4, v{V_L15}
    v_add_u32 v{V_OFFV}, v{V_OFFV}, v{V_T0}
    """)
    proj_addr(a, V_WOFF)

    def loadK(buf, soff):
        for j in range(4):
            a(f"buffer_load_dwordx4 {vr(buf + 4 * j, 4)}, v{V_OFFV}, {sr(SRD0, 4)}, {soff} offen offset:{256 * j}{NT}")

    def loadV(buf, soff):
        for i in range(4):
            a(f"buffer_load_dwordx4 {vr(buf + 4 * i, 4)}, v{V_OFFV}, {sr(SRD1, 4)}, {soff} offen offset:{256 * i}{NT}")

    def extra():
        a(f"s_mov_b32 s{S_LOOP}, 0")
        for d in range(DEPTH):
            loadK(KBUF[d], f"s{S_LOOP}")
            loadV(VBUF[d], f"s{S_LOOP}")
            a(f"s_add_u32 s{S_LOOP}, s{S_LOOP}, 32768")
        return 8 * DEPTH

    gemv512_phase(a, SRD3, ('global', SRD2), WO, 12, 20, 24, issue_extra=extra)
    for i in range(16):
        proj_load(a, SRD4, V_WOFF, WO, i)
    a(f"""
    v_lshlrev_b32 v{V_T0}, 4, v{V_L15}
    s_lshl_b32 s{S_T0}, s{S_B}, 8
    v_add_u32 v{V_T0}, s{S_T0}, v{V_T0}
    ds_read_b128 {vr(QF, 4)}, v{V_T0} offset:{L_BF2}
    """)
    a(f"""
    v_mov_b32 v{V_L}, 0
    v_mov_b32 v{V_M}, 0xff800000
    v_mov_b32 v{V_NMC}, 0
    v_mov_b32 v{V_O}, 0
    v_mov_b32 v{V_O + 1}, 0
    v_mov_b32 v{V_O + 2}, 0
    v_mov_b32 v{V_O + 3}, 0
    s_waitcnt lgkmcnt(0)
    """)
    rare_blocks = []
    stamp(a, 1)

    def tile(K, V):
        rare = a.new("brare")
        back = a.new("bback")
        a(f"s_waitcnt vmcnt({WAITN})")
        for j in range(4):
            for i in range(4):
                c = "0" if j == 0 else f"v{V_S + i}"
                a(f"v_dot2_f32_bf16 v{V_S + i}, v{K + 4 * i + j}, v{QF + j}, {c}")
        loadK(K, f"s{S_LOOP}")
        for r in (8, 4, 2, 1):
            for i in range(4):
                a(f"v_add_f32_dpp v{V_S + i}, v{V_S + i}, v{V_S + i} row_ror:{r} row_mask:0xf bank_mask:0xf")
        a(f"""
        v_max3_f32 v{V_TM}, v{V_S}, v{V_S + 1}, v{V_S + 2}
        v_max_f32 v{V_TM}, v{V_TM}, v{V_S + 3}
        v_cmp_gt_f32 vcc, v{V_TM}, v{V_M}
        s_cbranch_vccnz {rare}
        """)
        a.label(back)
        for i in range(4):
            a(f"v_fma_f32 v{V_S + i}, v{V_S + i}, s{S_C}, v{V_NMC}")
        for i in range(4):
            a(f"v_exp_f32 v{V_S + i}, v{V_S + i}")
        a("s_nop 0")
        for i in range(4):
            a(f"v_cvt_pk_bf16_f32 v{V_PK + i}, v{V_S + i}, v{V_S + i}")
        a(f"""
        v_add_f32 v{V_S}, v{V_S}, v{V_S + 1}
        v_add_f32 v{V_S + 2}, v{V_S + 2}, v{V_S + 3}
        v_add_f32 v{V_L}, v{V_L}, v{V_S}
        v_add_f32 v{V_L}, v{V_L}, v{V_S + 2}
        """)
        for i in range(4):
            for j in range(4):
                a(f"v_and_b32 v{AT + 4 * i + j}, v{V_PK + i}, v{V_MASK + j}")
        a(f"s_waitcnt vmcnt({WAITN})")
        for i in range(4):
            a(f"v_mfma_f32_16x16x32_bf16 {vr(V_O, 4)}, {vr(AT + 4 * i, 4)}, {vr(V + 4 * i, 4)}, {vr(V_O, 4)}")
        loadV(V, f"s{S_LOOP}")
        a(f"s_add_u32 s{S_LOOP}, s{S_LOOP}, 32768")
        a(f"s_sub_u32 s{S_CNT}, s{S_CNT}, 1\ns_cmp_eq_u32 s{S_CNT}, 0")
        rare_blocks.append((rare, back))

    loop = a.new("bloop")
    done = a.new("bdone")
    a.label(loop)
    for d in range(DEPTH):
        tile(KBUF[d], VBUF[d])
        if d != DEPTH - 1:
            a(f"s_cbranch_scc1 {done}")
        else:
            a(f"s_cbranch_scc0 {loop}")
    a(f"s_branch {done}")
    for rare, back in rare_blocks:
        a.label(rare)
        a(f"""
        v_readlane_b32 s{S_R2}, v{V_TM}, 0
        v_readlane_b32 s{S_R3}, v{V_TM}, 16
        v_readlane_b32 s{S_T4}, v{V_TM}, 32
        v_readlane_b32 s{S_T5}, v{V_TM}, 48
        s_nop 1
        v_max_f32 v{V_TM}, s{S_R2}, v{V_M}
        v_max_f32 v{V_TM}, s{S_R3}, v{V_TM}
        v_max_f32 v{V_TM}, s{S_T4}, v{V_TM}
        v_max_f32 v{V_TM}, s{S_T5}, v{V_TM}
        v_sub_f32 v{V_T0}, v{V_M}, v{V_TM}
        v_mul_f32 v{V_T0}, s{S_C}, v{V_T0}
        v_exp_f32 v{V_T0}, v{V_T0}
        v_mov_b32 v{V_M}, v{V_TM}
        v_mul_f32 v{V_NMC}, s{S_C}, v{V_TM}
        v_sub_f32 v{V_NMC}, 0, v{V_NMC}
        v_mul_f32 v{V_L}, v{V_L}, v{V_T0}
        v_mul_f32 v{V_O}, v{V_O}, v{V_T0}
        v_mul_f32 v{V_O + 1}, v{V_O + 1}, v{V_T0}
        v_mul_f32 v{V_O + 2}, v{V_O + 2}, v{V_T0}
        v_mul_f32 v{V_O + 3}, v{V_O + 3}, v{V_T0}
        s_branch {back}
        """)
    a.label(done)
    a(f"""
    s_nop 7
    v_readlane_b32 s{S_R2}, v{V_L}, 0
    v_readlane_b32 s{S_R3}, v{V_L}, 16
    v_readlane_b32 s{S_T4}, v{V_L}, 32
    v_readlane_b32 s{S_T5}, v{V_L}, 48
    s_nop 1
    v_mov_b32 v{V_L}, s{S_R2}
    v_add_f32 v{V_L}, s{S_R3}, v{V_L}
    v_add_f32 v{V_L}, s{S_T4}, v{V_L}
    v_add_f32 v{V_NMC}, s{S_T5}, v{V_L}
    v_lshlrev_b32 v{V_T0}, 5, v{V_L15}
    v_lshlrev_b32 v{V_T1}, 4, v{V_G}
    v_add_u32 v{V_T0}, v{V_T0}, v{V_T1}
    s_lshl_b32 s{S_T0}, s{S_WAVE}, 9
    v_add_u32 v{V_T0}, s{S_T0}, v{V_T0}
    s_lshl_b32 s{S_T0}, s{S_WAVE}, 3
    v_mov_b32 v{V_T1}, s{S_T0}
    v_cmp_gt_u32 vcc, 32, v{V_LANE}
    s_and_saveexec_b64 {sr(S_SAVE, 2)}, vcc
    ds_write_b128 v{V_T0}, {vr(V_O, 4)} offset:{L_PART}
    ds_write_b64 v{V_T1}, {vr(V_M, 2)} offset:{L_STAT}
    s_mov_b64 exec, {sr(S_SAVE, 2)}
    s_waitcnt lgkmcnt(0)
    s_barrier
    """)
    ST = 32
    a(f"v_mov_b32 v{V_T0}, 0")
    for k in range(4):
        a(f"ds_read_b128 {vr(ST + 4 * k, 4)}, v{V_T0} offset:{L_STAT + 16 * k}")
    a(f"""
    v_and_b32 v{V_T1}, 127, v{V_TID}
    v_lshlrev_b32 v{V_T2}, 2, v{V_T1}
    """)
    for w in range(8):
        a(f"ds_read_b32 v{48 + w}, v{V_T2} offset:{L_PART + 512 * w}")
    a("s_waitcnt lgkmcnt(0)")
    MG = 56
    a(f"""
    v_max3_f32 v{MG}, v{ST}, v{ST + 2}, v{ST + 4}
    v_max3_f32 v{MG}, v{MG}, v{ST + 6}, v{ST + 8}
    v_max3_f32 v{MG}, v{MG}, v{ST + 10}, v{ST + 12}
    v_max_f32 v{MG}, v{MG}, v{ST + 14}
    """)
    for w in range(8):
        a(f"""
        v_sub_f32 v{ST + 2 * w}, v{ST + 2 * w}, v{MG}
        v_mul_f32 v{ST + 2 * w}, s{S_C}, v{ST + 2 * w}
        v_exp_f32 v{ST + 2 * w}, v{ST + 2 * w}
        """)
    LG = 57
    a(f"s_nop 0\nv_mul_f32 v{LG}, v{ST}, v{ST + 1}\nv_mul_f32 v58, v{ST}, v48")
    for w in range(1, 8):
        a(f"v_fmac_f32 v{LG}, v{ST + 2 * w}, v{ST + 2 * w + 1}")
        a(f"v_fmac_f32 v58, v{ST + 2 * w}, v{48 + w}")
    a(f"""
    v_cvt_pk_bf16_f32 v58, v58, v58
    v_lshlrev_b32 v{V_T1}, 1, v{V_T1}
    ds_write_b16 v{V_T1}, v58 offset:{L_BF}
    s_waitcnt lgkmcnt(0) vmcnt(0)
    s_barrier
    """)
    stamp(a, 2)
    proj_compute(a, L_BF, False, WO, 12, 20, 24, waits=False)
    stamp(a, 3)
    a(f"""
    s_lshl_b32 s{S_T0}, s{S_B}, 5
    s_add_u32 s{S_T0}, s{S_T0}, s{S_H}
    s_lshl_b32 s{S_T0}, s{S_T0}, 2
    s_add_u32 s{S_T0}, s{S_T0}, s{S_Q}
    s_lshl_b32 s{S_OFF}, s{S_T0}, 11
    s_add_u32 s{S_OFF}, s{S_OFF}, {WS_YB}
    """)
    make_srd(a, SRD3, P_WS, S_OFF, 2048)
    a(f"""
    s_lshl_b32 s{S_OFF}, s{S_T0}, 3
    s_add_u32 s{S_OFF}, s{S_OFF}, {WS_BSTAT}
    """)
    make_srd(a, SRD4, P_WS, S_OFF, 8)
    a(f"""
    v_lshlrev_b32 v{V_T0}, 2, v{V_TID}
    ds_read_b32 v{V_T1}, v{V_T0} offset:{L_YP}
    ds_read_b32 v{V_T2}, v{V_T0} offset:{L_YP + 4096}
    s_waitcnt lgkmcnt(0)
    v_add_f32 v{V_T1}, v{V_T1}, v{V_T2}
    buffer_store_dword v{V_T1}, v{V_T0}, {sr(SRD3, 4)}, 0 offen sc1
    v_lshlrev_b32 v{V_T0}, 3, v{V_TID}
    buffer_store_dwordx2 {vr(MG, 2)}, v{V_T0}, {sr(SRD4, 4)}, 0 offen sc1
    """)
    sync_arrive(a, 64)
    a("s_endpgm")


LA_X = 0
LA_S = 65536
LA_T = 73728
LA_ROW = 144
LA_TILE = 32 * LA_ROW
LA_END = LA_T + 8 * 2 * LA_TILE


def stage_attnA(a):
    QF = 160
    ACC = 176
    V_S = 208
    TX = 240
    V_P = 8
    V_WT, V_XW, V_XR, V_TR, V_M = 3, 4, 5, 6, 7
    V_AF = 24
    V_L, V_NMC, V_TM, V_RS = 252, 253, 254, 255
    a(f"s_lshl_b32 s{S_OFF}, s{S_B}, 15")
    make_srd(a, SRD1, P_WS, S_OFF, 32768)
    a(f"""
    v_and_b32 v{V_T0}, 31, v{V_LANE}
    v_lshrrev_b32 v{V_T1}, 5, v{V_LANE}
    v_lshlrev_b32 v{V_T3}, 4, v{V_T1}
    v_lshlrev_b32 v{V_T2}, 10, v{V_T0}
    v_add_u32 v{V_T2}, v{V_T2}, v{V_T3}
    s_lshl_b32 s{S_T0}, s{S_WAVE}, 7
    v_add_u32 v{V_T2}, s{S_T0}, v{V_T2}
    """)
    for kk in range(4):
        a(f"buffer_load_dwordx4 {vr(QF + 4 * kk, 4)}, v{V_T2}, {sr(SRD1, 4)}, 0 offen offset:{32 * kk} sc1")
    a(f"""
    s_mul_i32 s{S_T0}, s{S_WAVE}, {2 * LA_TILE}
    s_add_u32 s{S_T0}, s{S_T0}, {LA_T}
    v_mul_u32_u24 v{V_AF}, {LA_ROW}, v{V_T0}
    v_add_u32 v{V_AF}, v{V_AF}, v{V_T3}
    v_add_u32 v{V_AF}, s{S_T0}, v{V_AF}
    v_lshrrev_b32 v13, 3, v{V_LANE}
    v_mul_u32_u24 v13, {LA_ROW}, v13
    v_and_b32 v14, 7, v{V_LANE}
    v_lshlrev_b32 v14, 4, v14
    v_add_u32 v13, v13, v14
    v_add_u32 v13, s{S_T0}, v13
    v_lshlrev_b32 v14, 4, v{V_LANE}
    s_lshl_b32 s{S_T1}, s{S_WAVE}, 13
    v_add_u32 v15, s{S_T1}, v14
    s_lshr_b32 s{S_T1}, s{S_WAVE}, 1
    s_lshl_b32 s{S_T1}, s{S_T1}, 10
    s_and_b32 s{S_T2}, s{S_WAVE}, 1
    s_lshl_b32 s{S_T2}, s{S_T2}, 3
    s_add_u32 s{S_T1}, s{S_T1}, s{S_T2}
    v_add_u32 v{V_RS}, s{S_T1}, v14
    """)
    a(f"""
    v_lshrrev_b32 v{V_T0}, 1, v{V_G}
    v_lshlrev_b32 v{V_T0}, 2, v{V_T0}
    v_lshrrev_b32 v{V_T1}, 2, v{V_L15}
    v_add_u32 v{V_T0}, v{V_T0}, v{V_T1}
    v_mul_u32_u24 v{V_T0}, {LA_ROW}, v{V_T0}
    v_and_b32 v{V_T1}, 1, v{V_G}
    v_lshlrev_b32 v{V_T1}, 5, v{V_T1}
    v_add_u32 v{V_T0}, v{V_T0}, v{V_T1}
    v_and_b32 v{V_T1}, 3, v{V_L15}
    v_lshlrev_b32 v{V_T1}, 3, v{V_T1}
    v_add_u32 v{V_T0}, v{V_T0}, v{V_T1}
    v_add_u32 v{V_TR}, s{S_T0}, v{V_T0}
    v_mov_b32 v{V_WT}, v13
    v_add_u32 v{V_XR}, {LA_S}, v14
    v_add_u32 v25, {LA_S}, v{V_RS}
    v_mov_b32 v{V_XW}, v15
    v_mov_b32 v{V_M}, 0xff800000
    v_mov_b32 v{V_L}, 0
    v_mov_b32 v{V_NMC}, 0
    """)
    for i in range(32):
        a(f"v_mov_b32 v{ACC + i}, 0")
    a("s_waitcnt vmcnt(0)")
    stamp(a, 6)
    rare_blocks = []

    def rnd(C):
        rare = a.new("arare")
        back = a.new("aback")
        for tl in range(2):
            for kk in range(4):
                a(f"ds_write_b128 v{V_WT}, {vr(C + 16 * tl + 4 * kk, 4)} offset:{tl * LA_TILE + kk * 8 * LA_ROW}")
        a("s_waitcnt lgkmcnt(0)")
        for tl in range(2):
            for kk in range(4):
                a(f"ds_read_b128 {vr(V_P + 4 * kk, 4)}, v{V_AF} offset:{tl * LA_TILE + 32 * kk}")
            for kk in range(4):
                a(f"s_waitcnt lgkmcnt({3 - kk})")
                c = "0" if kk == 0 else vr(V_S + 16 * tl, 16)
                a(f"v_mfma_f32_32x32x16_bf16 {vr(V_S + 16 * tl, 16)}, {vr(V_P + 4 * kk, 4)}, {vr(QF + 4 * kk, 4)}, {c}")
        a("s_nop 7")
        for q in range(4):
            a(f"ds_write_b128 v{V_XW}, {vr(V_S + 4 * q, 4)} offset:{LA_X + q * 1024}")
        a("s_nop 3")
        for q in range(4):
            a(f"ds_write_b128 v{V_XW}, {vr(V_S + 16 + 4 * q, 4)} offset:{LA_X + 4096 + q * 1024}")
        a("s_waitcnt lgkmcnt(0)")
        a("s_barrier")
        for tl in range(2):
            for w in range(8):
                a(f"ds_read_b64 {vr(V_S + 16 * tl + 2 * w, 2)}, v{V_RS} offset:{LA_X + w * 8192 + tl * 4096}")
        for tl in range(2):
            for w in range(1, 8):
                a(f"s_waitcnt lgkmcnt({15 - 8 * tl - w})")
                a(f"v_add_f32 v{V_S + 16 * tl}, v{V_S + 16 * tl}, v{V_S + 16 * tl + 2 * w}")
                a(f"v_add_f32 v{V_S + 16 * tl + 1}, v{V_S + 16 * tl + 1}, v{V_S + 16 * tl + 2 * w + 1}")
        a(f"""
        ds_write_b64 v25, {vr(V_S, 2)}
        ds_write_b64 v25, {vr(V_S + 16, 2)} offset:4096
        s_waitcnt lgkmcnt(0)
        s_barrier
        """)
        for q in range(8):
            a(f"ds_read_b128 {vr(V_S + 4 * q, 4)}, v{V_XR} offset:{q * 1024}")
        units = [(tl, ct, kh) for tl in range(2) for kh in range(2) for ct in range(2)]

        def trread(u):
            tl, ct, kh = units[u]
            t = TX + 4 * (u % 3)
            base = tl * LA_TILE + (kh * 16) * LA_ROW + ct * 64
            a(f"ds_read_b64_tr_b16 {vr(t, 2)}, v{V_TR} offset:{base}")
            a(f"ds_read_b64_tr_b16 {vr(t + 2, 2)}, v{V_TR} offset:{base + 8 * LA_ROW}")
        for u in range(3):
            trread(u)
        a("s_waitcnt lgkmcnt(6)")
        a(f"v_max3_f32 v{V_TM}, v{V_S}, v{V_S + 1}, v{V_S + 2}")
        for k in range(3, 31, 2):
            a(f"v_max3_f32 v{V_TM}, v{V_TM}, v{V_S + k}, v{V_S + k + 1}")
        a(f"""
        v_max_f32 v{V_TM}, v{V_TM}, v{V_S + 31}
        v_cmp_gt_f32 vcc, v{V_TM}, v{V_M}
        s_cbranch_vccnz {rare}
        """)
        a.label(back)
        for i in range(32):
            a(f"v_fma_f32 v{V_S + i}, v{V_S + i}, s{S_C}, v{V_NMC}")
        for i in range(32):
            a(f"v_exp_f32 v{V_S + i}, v{V_S + i}")
        a("s_nop 0")
        for i in range(16):
            a(f"v_cvt_pk_bf16_f32 v{V_P + i}, v{V_S + 2 * i}, v{V_S + 2 * i + 1}")
        a("s_nop 1")
        adds = []
        for st in (1, 2, 4, 8, 16):
            for i in range(0, 32, 2 * st):
                adds.append(f"v_add_f32 v{V_S + i}, v{V_S + i}, v{V_S + i + st}")
        adds.append(f"v_add_f32 v{V_L}, v{V_L}, v{V_S}")
        for u in range(8):
            tl, ct, kh = units[u]
            t = TX + 4 * (u % 3)
            a(f"s_waitcnt lgkmcnt({2 * min(2, 7 - u)})")
            a(f"v_mfma_f32_32x32x16_bf16 {vr(ACC + 16 * ct, 16)}, {vr(t, 4)}, {vr(V_P + 8 * tl + 4 * kh, 4)}, {vr(ACC + 16 * ct, 16)}")
            if u + 3 < 8:
                trread(u + 3)
            for x in adds[4 * u: 4 * u + 4]:
                a(x)
        rare_blocks.append((rare, back))

    for r in range(4):
        rnd(A_C + 32 * r)
        if r == 0:
            stamp(a, 7)
    done = a.new("adone")
    a(f"s_branch {done}")
    for rare, back in rare_blocks:
        a.label(rare)
        a(f"""
        v_mov_b32 v{V_P}, v{V_TM}
        v_mov_b32 v{V_P + 1}, v{V_TM}
        s_nop 1
        v_permlane32_swap_b32 v{V_P}, v{V_P + 1}
        s_nop 1
        v_max3_f32 v{V_TM}, v{V_P}, v{V_P + 1}, v{V_M}
        v_sub_f32 v{V_P}, v{V_M}, v{V_TM}
        v_mul_f32 v{V_P}, s{S_C}, v{V_P}
        v_exp_f32 v{V_P}, v{V_P}
        v_mov_b32 v{V_M}, v{V_TM}
        v_mul_f32 v{V_NMC}, s{S_C}, v{V_TM}
        v_sub_f32 v{V_NMC}, 0, v{V_NMC}
        v_mul_f32 v{V_L}, v{V_L}, v{V_P}
        """)
        for i in range(32):
            a(f"v_mul_f32 v{ACC + i}, v{ACC + i}, v{V_P}")
        a(f"s_branch {back}")
    a.label(done)
    a(f"""
    s_lshl_b32 s{S_T0}, s2, 16
    s_add_u32 s{S_OFF}, s{S_T0}, {WS_APART}
    """)
    make_srd(a, SRD2, P_WS, S_OFF, 65536)
    a(f"""
    s_lshl_b32 s{S_T0}, s{S_B}, 13
    s_lshl_b32 s{S_T1}, s{S_Q}, 3
    s_add_u32 s{S_T0}, s{S_T0}, s{S_T1}
    s_add_u32 s{S_OFF}, s{S_T0}, {WS_ASTAT}
    """)
    make_srd(a, SRD3, P_WS, S_OFF, 8192 - 248)
    a(f"""
    s_mul_i32 s{S_T0}, s{S_WAVE}, {2 * LA_TILE}
    s_add_u32 s{S_T0}, s{S_T0}, {LA_T}
    v_and_b32 v{TX}, 31, v{V_LANE}
    v_lshrrev_b32 v{TX + 1}, 5, v{V_LANE}
    v_mul_u32_u24 v{TX + 2}, 272, v{TX}
    v_lshlrev_b32 v{TX + 1}, 4, v{TX + 1}
    v_add_u32 v{TX + 2}, v{TX + 2}, v{TX + 1}
    v_add_u32 v{TX + 2}, s{S_T0}, v{TX + 2}
    v_lshrrev_b32 v{TX + 3}, 4, v{V_LANE}
    v_and_b32 v{TX + 4}, 15, v{V_LANE}
    v_lshlrev_b32 v{TX + 4}, 4, v{TX + 4}
    v_mul_u32_u24 v{TX + 5}, 272, v{TX + 3}
    v_add_u32 v{TX + 5}, v{TX + 5}, v{TX + 4}
    v_add_u32 v{TX + 5}, s{S_T0}, v{TX + 5}
    v_lshlrev_b32 v{TX + 6}, 11, v{TX + 3}
    v_add_u32 v{TX + 6}, v{TX + 6}, v{TX + 4}
    s_lshl_b32 s{S_T0}, s{S_WAVE}, 8
    v_add_u32 v{TX + 6}, s{S_T0}, v{TX + 6}
    s_nop 7
    s_nop 3
    """)
    for ct in range(2):
        for q4 in range(4):
            a(f"ds_write_b128 v{TX + 2}, {vr(ACC + 16 * ct + 4 * q4, 4)} offset:{ct * 128 + q4 * 32}")
    a("s_waitcnt lgkmcnt(0)")
    for j in range(8):
        a(f"ds_read_b128 {vr(ACC + 4 * j, 4)}, v{TX + 5} offset:{j * 4 * 272}")
    a(f"s_mov_b32 s{S_T0}, 0")
    for j in range(8):
        a(f"s_waitcnt lgkmcnt({7 - j})")
        a(f"buffer_store_dwordx4 {vr(ACC + 4 * j, 4)}, v{TX + 6}, {sr(SRD2, 4)}, s{S_T0} offen sc1")
        if j != 7:
            a(f"s_add_u32 s{S_T0}, s{S_T0}, 8192")
    a(f"""
    v_mov_b32 v{TX + 8}, v{V_L}
    v_mov_b32 v{TX + 9}, v{V_L}
    s_nop 1
    v_permlane32_swap_b32 v{TX + 8}, v{TX + 9}
    s_nop 1
    v_add_f32 v{TX + 11}, v{TX + 8}, v{TX + 9}
    v_mov_b32 v{TX + 10}, v{V_M}
    v_lshlrev_b32 v{TX + 3}, 8, v{V_TID}
    buffer_store_dwordx2 {vr(TX + 10, 2)}, v{TX + 3}, {sr(SRD3, 4)}, 0 offen sc1
    """)


F_WUV = [128 + 4 * i for i in range(16)]
F_WO = [192 + 4 * i for i in range(16)]


def finishA_prefetch(a):
    a(f"""
    s_and_b32 s{S_H}, s2, 31
    s_lshr_b32 s{S_B}, s2, 5
    s_lshl_b32 s{S_OFF}, s{S_H}, 8
    """)
    make_srd(a, SRD2, P_WUV, S_OFF, 0)
    a(f"s_sub_u32 s{SRD2 + 2}, {512 * 8192}, s{S_OFF}")
    a(f"s_lshl_b32 s{S_OFF}, s{S_H}, 17")
    make_srd(a, SRD3, P_AWO, S_OFF, 131072)
    gemv512_wloads(a, SRD2, F_WUV)
    proj_addr(a, 31)
    for i in range(16):
        proj_load(a, SRD3, 31, F_WO, i)


def stage_finishA(a):
    a(f"""
    s_lshl_b32 s{S_T0}, s{S_B}, 21
    s_lshl_b32 s{S_T1}, s{S_H}, 11
    s_add_u32 s{S_T0}, s{S_T0}, s{S_T1}
    s_add_u32 s{S_OFF}, s{S_T0}, {WS_APART}
    """)
    make_srd(a, SRD0, P_WS, S_OFF, 31 * 65536 + 2048)
    a(f"""
    s_lshl_b32 s{S_T0}, s{S_B}, 13
    s_lshl_b32 s{S_T1}, s{S_H}, 8
    s_add_u32 s{S_T0}, s{S_T0}, s{S_T1}
    s_add_u32 s{S_OFF}, s{S_T0}, {WS_ASTAT}
    """)
    make_srd(a, SRD1, P_WS, S_OFF, 256)
    a(f"""
    s_lshl_b32 s{S_T0}, s{S_H}, 12
    s_lshl_b32 s{S_T1}, s{S_B}, 11
    s_add_u32 s{S_T0}, s{S_T0}, s{S_T1}
    s_add_u32 s{S_OFF}, s{S_T0}, {WS_YA}
    """)
    make_srd(a, SRD4, P_WS, S_OFF, 2048)
    STAT = 32
    PART = 96
    a(f"""
    v_lshrrev_b32 v{V_T0}, 7, v{V_TID}
    v_and_b32 v{V_T1}, 127, v{V_TID}
    v_lshlrev_b32 v{V_T2}, 19, v{V_T0}
    v_lshlrev_b32 v{V_T3}, 4, v{V_T1}
    v_add_u32 v{V_T2}, v{V_T2}, v{V_T3}
    v_mov_b32 v{V_T3}, 0
    s_mov_b32 s{S_T0}, 0
    """)
    for k in range(16):
        a(f"buffer_load_dwordx4 {vr(STAT + 4 * k, 4)}, v{V_T3}, {sr(SRD1, 4)}, 0 offen offset:{16 * k} sc1")
    for k in range(8):
        a(f"buffer_load_dwordx4 {vr(PART + 4 * k, 4)}, v{V_T2}, {sr(SRD0, 4)}, s{S_T0} offen sc1")
        if k != 7:
            a(f"s_add_u32 s{S_T0}, s{S_T0}, 65536")
    a("s_waitcnt vmcnt(8)")
    MG, LG = 12, 13
    a(f"v_max_f32 v{MG}, v{STAT}, v{STAT + 2}")
    for k in range(2, 32, 2):
        a(f"v_max3_f32 v{MG}, v{MG}, v{STAT + 2 * k}, v{STAT + 2 * k + 2}")
    for k in range(32):
        a(f"""
        v_sub_f32 v{STAT + 2 * k}, v{STAT + 2 * k}, v{MG}
        v_mul_f32 v{STAT + 2 * k}, s{S_C}, v{STAT + 2 * k}
        v_exp_f32 v{STAT + 2 * k}, v{STAT + 2 * k}
        """)
    a(f"s_nop 0\nv_mul_f32 v{LG}, v{STAT}, v{STAT + 1}")
    for k in range(1, 32):
        a(f"v_fmac_f32 v{LG}, v{STAT + 2 * k}, v{STAT + 2 * k + 1}")
    a(f"v_rcp_f32 v{LG}, v{LG}")
    a(f"s_lshr_b32 s{S_T1}, s{S_WAVE}, 1")
    for g in range(4):
        a(f"s_cmp_eq_u32 s{S_T1}, {g}\ns_cselect_b64 vcc, -1, 0")
        for k in range(8):
            if g == 0:
                a(f"v_mov_b32 v{16 + k}, v{STAT + 2 * k}")
            else:
                a(f"v_cndmask_b32 v{16 + k}, v{16 + k}, v{STAT + 2 * (8 * g + k)}, vcc")
    a("s_waitcnt vmcnt(0)")
    for i in range(4):
        a(f"v_mul_f32 v{24 + i}, v16, v{PART + i}")
    for k in range(1, 8):
        for i in range(4):
            a(f"v_fmac_f32 v{24 + i}, v{16 + k}, v{PART + 4 * k + i}")
    for i in range(4):
        a(f"v_mul_f32 v{24 + i}, v{24 + i}, v{LG}")
    a(f"""
    v_lshlrev_b32 v{V_T0}, 4, v{V_TID}
    ds_write_b128 v{V_T0}, {vr(24, 4)} offset:{L_YP}
    s_waitcnt lgkmcnt(0)
    s_barrier
    v_and_b32 v{V_T1}, 255, v{V_TID}
    v_lshlrev_b32 v{V_T0}, 3, v{V_T1}
    ds_read_b64 {vr(16, 2)}, v{V_T0} offset:{L_YP}
    ds_read_b64 {vr(18, 2)}, v{V_T0} offset:{L_YP + 2048}
    ds_read_b64 {vr(20, 2)}, v{V_T0} offset:{L_YP + 4096}
    ds_read_b64 {vr(22, 2)}, v{V_T0} offset:{L_YP + 6144}
    s_waitcnt lgkmcnt(0)
    v_add_f32 v16, v16, v18
    v_add_f32 v17, v17, v19
    v_add_f32 v20, v20, v22
    v_add_f32 v21, v21, v23
    v_add_f32 v16, v16, v20
    v_add_f32 v17, v17, v21
    v_cvt_pk_bf16_f32 v16, v16, v17
    v_lshlrev_b32 v{V_T0}, 2, v{V_TID}
    ds_write_b32 v{V_T0}, v16 offset:{L_BF}
    s_waitcnt lgkmcnt(0)
    s_barrier
    """)
    gemv512_xload(a, ('lds', L_BF), 16)
    gemv512_compute(a, F_WUV, 16, 24, 28, None)
    proj_compute(a, L_BF2, True, F_WO, 16, 24, 28, waits=False)
    a(f"""
    v_lshlrev_b32 v{V_T0}, 2, v{V_TID}
    ds_read_b32 v12, v{V_T0} offset:{L_YP}
    ds_read_b32 v13, v{V_T0} offset:{L_YP + 4096}
    s_waitcnt lgkmcnt(0)
    v_add_f32 v12, v12, v13
    buffer_store_dword v12, v{V_T0}, {sr(SRD4, 4)}, 0 offen sc1
    """)


def gen_main(a):
    a.raw(".p2align 8")
    a.label(KNAME)
    a(f"s_cmp_ge_u32 s2, {NA_WG + NB_WG}\ns_cbranch_scc1 L_main_end")
    load_kernargs(a)
    lane_setup(a)
    make_masks(a)
    perm_consts(a)
    a("s_waitcnt lgkmcnt(0)")
    make_srd(a, SRD_DBG, P_DBG, None, 256)
    a(f"s_cmp_lt_u32 s2, {NA_WG}\ns_cbranch_scc1 L_main_A")
    if "noB" in EXP:
        a("s_endpgm")
    gen_B_role(a)
    a.label("L_main_A")
    if "noA" in EXP:
        a("s_endpgm")
    stamp(a, 0)
    stage_prepA(a)
    stamp(a, 1)
    sync_arrive(a, 0)
    attnA_preload(a)
    sync_wait(a, 0, NA_WG)
    stamp(a, 2)
    stage_attnA(a)
    stamp(a, 3)
    sync_arrive(a, 128)
    lane_setup(a)
    make_masks(a)
    finishA_prefetch(a)
    sync_wait(a, 128, NA_WG)
    stamp(a, 4)
    stage_finishA(a)
    stamp(a, 5)
    sync_arrive(a, 64)
    a("s_cmp_lt_u32 s2, 32\ns_cbranch_scc1 L_main_end")
    sync_wait(a, 64, NA_WG + NB_WG)
    stage_final(a)
    a.label("L_main_end")
    a("s_endpgm")


def stage_final(a):
    a(f"""
    s_and_b32 s{S_Q}, s2, 7
    s_lshr_b32 s{S_B}, s2, 3
    s_and_b32 s{S_B}, s{S_B}, 1
    """)
    make_srd(a, SRD4, P_OUT, None, 4096)
    ACC = 12
    a("s_cmp_ge_u32 s2, 48\ns_cbranch_scc1 L_final_B")
    make_srd_imm(a, SRD0, P_WS, WS_YA, 32 * 4096)
    a(f"""
    s_lshl_b32 s{S_T0}, s{S_B}, 11
    s_lshl_b32 s{S_T1}, s{S_Q}, 8
    s_add_u32 s{S_T0}, s{S_T0}, s{S_T1}
    s_lshl_b32 s{S_T1}, s{S_WAVE}, 14
    s_add_u32 s{S_T0}, s{S_T0}, s{S_T1}
    v_lshlrev_b32 v{V_T0}, 2, v{V_LANE}
    v_add_u32 v{V_T0}, s{S_T0}, v{V_T0}
    s_mov_b32 s{S_T1}, 4096
    s_mov_b32 s{S_T2}, 8192
    s_mov_b32 s{S_T3}, 12288
    buffer_load_dword v16, v{V_T0}, {sr(SRD0, 4)}, 0 offen sc1
    buffer_load_dword v17, v{V_T0}, {sr(SRD0, 4)}, s{S_T1} offen sc1
    buffer_load_dword v18, v{V_T0}, {sr(SRD0, 4)}, s{S_T2} offen sc1
    buffer_load_dword v19, v{V_T0}, {sr(SRD0, 4)}, s{S_T3} offen sc1
    s_waitcnt vmcnt(0)
    v_add_f32 v16, v16, v17
    v_add_f32 v18, v18, v19
    v_add_f32 v{ACC}, v16, v18
    s_mov_b32 s{S_T5}, 0
    s_branch L_final_red
    """)
    a.label("L_final_B")
    make_srd_imm(a, SRD0, P_WS, WS_YB, 2 * 32 * 4 * 2048)
    make_srd_imm(a, SRD1, P_WS, WS_BSTAT, 2 * 32 * 32)
    a(f"""
    s_lshl_b32 s{S_T0}, s{S_B}, 5
    s_lshl_b32 s{S_T1}, s{S_WAVE}, 2
    s_add_u32 s{S_T0}, s{S_T0}, s{S_T1}
    s_lshl_b32 s{S_T1}, s{S_T0}, 13
    s_lshl_b32 s{S_T2}, s{S_Q}, 8
    s_add_u32 s{S_T1}, s{S_T1}, s{S_T2}
    v_lshlrev_b32 v{V_T0}, 2, v{V_LANE}
    v_add_u32 v{V_T0}, s{S_T1}, v{V_T0}
    s_lshl_b32 s{S_T1}, s{S_T0}, 5
    v_mov_b32 v{V_T1}, s{S_T1}
    """)
    ST = 32
    Y = 64
    for k in range(4):
        a(f"buffer_load_dwordx4 {vr(ST + 8 * k, 4)}, v{V_T1}, {sr(SRD1, 4)}, 0 offen offset:{32 * k} sc1")
        a(f"buffer_load_dwordx4 {vr(ST + 8 * k + 4, 4)}, v{V_T1}, {sr(SRD1, 4)}, 0 offen offset:{32 * k + 16} sc1")
    a(f"s_mov_b32 s{S_T1}, 0")
    for k in range(4):
        for s in range(3):
            a(f"buffer_load_dword v{Y + 4 * k + s}, v{V_T0}, {sr(SRD0, 4)}, s{S_T1} offen sc1")
            if not (k == 3 and s == 2):
                a(f"s_add_u32 s{S_T1}, s{S_T1}, {2048 if s != 2 else 4096}")
    a(f"s_waitcnt vmcnt(0)\nv_mov_b32 v{ACC}, 0")
    for k in range(4):
        b = ST + 8 * k
        a(f"""
        v_max3_f32 v16, v{b}, v{b + 2}, v{b + 4}
        """)
        for s in range(3):
            a(f"""
            v_sub_f32 v{b + 2 * s}, v{b + 2 * s}, v16
            v_mul_f32 v{b + 2 * s}, s{S_C}, v{b + 2 * s}
            v_exp_f32 v{b + 2 * s}, v{b + 2 * s}
            """)
        a(f"s_nop 0\nv_mul_f32 v17, v{b}, v{b + 1}\nv_mul_f32 v18, v{b}, v{Y + 4 * k}")
        for s in range(1, 3):
            a(f"v_fmac_f32 v17, v{b + 2 * s}, v{b + 2 * s + 1}\nv_fmac_f32 v18, v{b + 2 * s}, v{Y + 4 * k + s}")
        a(f"v_rcp_f32 v17, v17\ns_nop 0\nv_fmac_f32 v{ACC}, v18, v17")
    a(f"s_mov_b32 s{S_T5}, 1024")
    a.label("L_final_red")
    a(f"""
    v_lshlrev_b32 v{V_T0}, 2, v{V_TID}
    ds_write_b32 v{V_T0}, v{ACC}
    s_waitcnt lgkmcnt(0)
    s_barrier
    s_cmp_lg_u32 s{S_WAVE}, 0
    s_cbranch_scc1 L_final_end
    """)
    for w in range(8):
        a(f"ds_read_b32 v{16 + w}, v{V_T0} offset:{256 * w}")
    a("s_waitcnt lgkmcnt(0)")
    for w in range(1, 8):
        a(f"v_add_f32 v16, v16, v{16 + w}")
    a(f"""
    v_cvt_pk_bf16_f32 v16, v16, v16
    s_lshl_b32 s{S_T0}, s{S_B}, 11
    s_lshl_b32 s{S_T1}, s{S_Q}, 7
    s_add_u32 s{S_T0}, s{S_T0}, s{S_T1}
    s_add_u32 s{S_T0}, s{S_T0}, s{S_T5}
    v_lshlrev_b32 v{V_T0}, 1, v{V_LANE}
    buffer_store_short v16, v{V_T0}, {sr(SRD4, 4)}, s{S_T0} offen
    """)
    a.label("L_final_end")


def descriptor(name, vgpr):
    return f"""
.amdhsa_kernel {name}
  .amdhsa_next_free_vgpr {vgpr}
  .amdhsa_next_free_sgpr 100
  .amdhsa_accum_offset {(vgpr + 3) // 4 * 4}
  .amdhsa_group_segment_fixed_size 0
  .amdhsa_kernarg_size 112
  .amdhsa_user_sgpr_count 2
  .amdhsa_user_sgpr_kernarg_segment_ptr 1
  .amdhsa_system_sgpr_workgroup_id_x 1
.end_amdhsa_kernel
"""


def main():
    a = Asm()
    gen_main(a)
    txt = HEADER
    txt += f"; @launch grid=({NA_WG + NB_WG},1,1) block=(512,1,1) lds={LA_END}\n"
    txt += '.amdgcn_target "amdgcn-amd-amdhsa--gfx950"\n.text\n'
    txt += f".globl {KNAME}\n.type {KNAME},@function\n"
    txt += a.text()
    txt += '.section .rodata,"a"\n.p2align 6\n'
    txt += descriptor(KNAME, NVGPR)
    open(OUT, "w").write(txt)
    print("wrote", OUT, len(txt))


if __name__ == "__main__":
    main()
```

```python
import os
import struct
import sys

EXP = os.environ.get("EXP", "")

NAME = "concat_heads__compressed_kv_cla__mha_block_cached__decode"
OUT = os.environ.get("OUTS", f"cdna_kernels/{NAME}.s")

HEADER = """; Kernarg layout for this problem (112 bytes, ptrs only, base s[0:1]):
"""


def f32bits(x):
    return struct.unpack("<I", struct.pack("<f", x))[0]


import math
CSCALE = (128 ** -0.5) * math.log2(math.e)

NSA = 32
WS_QP = 0
WS_APART = 0x10000
WS_ASTAT = WS_APART + 2 * NSA * 32 * 512 * 4
WS_YA = WS_ASTAT + 0x10000
WS_YB = WS_YA + 32 * 2 * 512 * 4
WS_BSTAT = WS_YB + 2 * 32 * 4 * 512 * 4
WS_END = WS_BSTAT + 0x10000

NA_WG = 2 * NSA
NB_WG = 192
NVGPR = 256


class Asm:
    def __init__(self):
        self.lines = []
        self.uid = 0

    def __call__(self, s):
        for ln in s.strip("\n").split("\n"):
            ln = ln.strip()
            if ln:
                self.lines.append("    " + ln)

    def label(self, l):
        self.lines.append(l + ":")

    def new(self, base):
        self.uid += 1
        return f"L_{base}_{self.uid}"

    def raw(self, s):
        self.lines.append(s)

    def text(self):
        return "\n".join(self.lines) + "\n"


def vr(a, n):
    return f"v[{a}:{a + n - 1}]"


def sr(a, n):
    return f"s[{a}:{a + n - 1}]"


P_AX, P_CKV, P_AWQ, P_WUK, P_WUV, P_AWO, P_BX, P_BK = 16, 18, 20, 22, 24, 26, 28, 30
P_BV, P_BWQ, P_BWO, P_OUT = 32, 34, 36, 38
P_DBG, P_WS = 40, 42
SRD0, SRD1, SRD2, SRD3, SRD4 = 44, 48, 52, 56, 60
S_WAVE = 64
S_C = 65
S_T0, S_T1, S_T2, S_T3, S_T4, S_T5 = 66, 67, 68, 69, 70, 71
S_H, S_B, S_Q = 72, 73, 74
S_LOOP = 75
S_OFF = 76
S_SAVE = 78
S_R0, S_R1, S_R2, S_R3 = 80, 81, 82, 83

V_TID = 0
V_LANE = 1
V_L15 = 2
V_G = 3
V_MASK = 4
V_T0, V_T1, V_T2, V_T3 = 8, 9, 10, 11


def load_kernargs(a):
    a(f"""
    s_load_dwordx16 {sr(16, 16)}, s[0:1], 0
    s_load_dwordx8 {sr(32, 8)}, s[0:1], 64
    s_load_dwordx4 {sr(40, 4)}, s[0:1], 96
    """)


def lane_setup(a):
    a(f"""
    v_and_b32 v{V_LANE}, 63, v{V_TID}
    v_lshrrev_b32 v{V_T0}, 6, v{V_TID}
    v_and_b32 v{V_L15}, 15, v{V_LANE}
    v_readfirstlane_b32 s{S_WAVE}, v{V_T0}
    v_lshrrev_b32 v{V_G}, 4, v{V_LANE}
    s_mov_b32 s{S_C}, {f32bits(CSCALE):#x}
    """)


def make_masks(a):
    a(f"""
    v_and_b32 v{V_T0}, 7, v{V_LANE}
    v_lshrrev_b32 v{V_T1}, 1, v{V_T0}
    v_and_b32 v{V_T0}, 1, v{V_T0}
    v_lshlrev_b32 v{V_T0}, 4, v{V_T0}
    v_mov_b32 v{V_T2}, 0xffff
    v_lshlrev_b32 v{V_T2}, v{V_T0}, v{V_T2}
    """)
    for j in range(4):
        a(f"""
        v_cmp_eq_u32 vcc, {j}, v{V_T1}
        s_nop 1
        v_cndmask_b32 v{V_MASK + j}, 0, v{V_T2}, vcc
        """)


def make_srd(a, srd, ptr, off_sgpr, nbytes):
    if off_sgpr is None:
        a(f"s_mov_b32 s{srd}, s{ptr}\ns_mov_b32 s{srd + 1}, s{ptr + 1}")
    else:
        a(f"s_add_u32 s{srd}, s{ptr}, s{off_sgpr}\ns_addc_u32 s{srd + 1}, s{ptr + 1}, 0")
    a(f"s_mov_b32 s{srd + 2}, {nbytes:#x}\ns_mov_b32 s{srd + 3}, 0x00020000")


def make_srd_imm(a, srd, ptr, off, nbytes):
    a(f"s_add_u32 s{srd}, s{ptr}, {off:#x}\ns_addc_u32 s{srd + 1}, s{ptr + 1}, 0")
    a(f"s_mov_b32 s{srd + 2}, {nbytes:#x}\ns_mov_b32 s{srd + 3}, 0x00020000")


def delta_mfma(a, xregs, i, data, acc, tmp, first=False):
    sel = S_R0 if (i & 1) == 0 else S_R1
    a(f"v_perm_b32 v{tmp + 4}, v{xregs + (i >> 1)}, v{xregs + (i >> 1)}, s{sel}")
    for j in range(4):
        a(f"v_and_b32 v{tmp + j}, v{tmp + 4}, v{V_MASK + j}")
    a("s_nop 1")
    c = "0" if first else vr(acc, 4)
    a(f"v_mfma_f32_16x16x32_bf16 {vr(acc, 4)}, {vr(tmp, 4)}, {vr(data, 4)}, {c}")


def perm_consts(a):
    a(f"s_mov_b32 s{S_R0}, 0x01000100\ns_mov_b32 s{S_R1}, 0x03020302")


L_PART = 0
L_BF = 8192
L_BF2 = 10240
L_STAT = 11264
L_YP = 12288
L_END_SMALL = 20480


def gemv512_xload(a, xsrc, xregs):
    a(f"""
    v_lshrrev_b32 v{V_T0}, 3, v{V_L15}
    v_lshlrev_b32 v{V_T0}, 10, v{V_T0}
    v_lshlrev_b32 v{V_T1}, 5, v{V_G}
    v_add_u32 v{V_T0}, v{V_T0}, v{V_T1}
    s_lshl_b32 s{S_T0}, s{S_WAVE}, 7
    v_add_u32 v{V_T0}, s{S_T0}, v{V_T0}
    """)
    if xsrc[0] == 'global':
        a(f"""
        buffer_load_dwordx4 {vr(xregs, 4)}, v{V_T0}, {sr(xsrc[1], 4)}, 0 offen
        buffer_load_dwordx4 {vr(xregs + 4, 4)}, v{V_T0}, {sr(xsrc[1], 4)}, 0 offen offset:16
        """)
    else:
        a(f"""
        ds_read_b128 {vr(xregs, 4)}, v{V_T0} offset:{xsrc[1]}
        ds_read_b128 {vr(xregs + 4, 4)}, v{V_T0} offset:{xsrc[1] + 16}
        s_waitcnt lgkmcnt(0)
        """)


def gemv512_wloads(a, srd_w, wbuf):
    a(f"""
    v_lshlrev_b32 v{V_T1}, 17, v{V_G}
    v_lshlrev_b32 v{V_T2}, 4, v{V_L15}
    v_add_u32 v{V_T1}, v{V_T1}, v{V_T2}
    s_lshl_b32 s{S_T0}, s{S_WAVE}, 19
    """)
    for i in range(16):
        a(f"buffer_load_dwordx4 {vr(wbuf[i], 4)}, v{V_T1}, {sr(srd_w, 4)}, s{S_T0} offen")
        if i != 15:
            a(f"s_add_u32 s{S_T0}, s{S_T0}, 8192")


def gemv512_compute(a, wbuf, xregs, acc, tmp, nyounger):
    for i in range(16):
        if nyounger is not None:
            a(f"s_waitcnt vmcnt({15 - i + nyounger})")
        delta_mfma(a, xregs, i, wbuf[i], acc, tmp, first=(i == 0))
    a(f"""
    v_lshrrev_b32 v{V_T0}, 1, v{V_G}
    v_lshlrev_b32 v{V_T0}, 9, v{V_T0}
    v_lshlrev_b32 v{V_T1}, 5, v{V_L15}
    v_add_u32 v{V_T0}, v{V_T0}, v{V_T1}
    v_and_b32 v{V_T1}, 1, v{V_G}
    v_lshlrev_b32 v{V_T1}, 4, v{V_T1}
    v_add_u32 v{V_T0}, v{V_T0}, v{V_T1}
    s_lshl_b32 s{S_T0}, s{S_WAVE}, 10
    v_add_u32 v{V_T0}, s{S_T0}, v{V_T0}
    s_nop 7
    ds_write_b128 v{V_T0}, {vr(acc, 4)} offset:{L_PART}
    s_waitcnt lgkmcnt(0)
    s_barrier
    """)
    a(f"""
    v_and_b32 v{V_T0}, 255, v{V_TID}
    v_lshlrev_b32 v{V_T1}, 2, v{V_T0}
    """)
    for w in range(8):
        a(f"ds_read_b32 v{xregs + w}, v{V_T1} offset:{L_PART + w * 1024}")
    a("s_waitcnt lgkmcnt(0)")
    for w in range(1, 8):
        a(f"v_add_f32 v{xregs}, v{xregs}, v{xregs + w}")
    a(f"""
    v_cvt_pk_bf16_f32 v{xregs}, v{xregs}, v{xregs}
    v_lshlrev_b32 v{V_T1}, 1, v{V_T0}
    ds_write_b16 v{V_T1}, v{xregs} offset:{L_BF2}
    s_waitcnt lgkmcnt(0)
    s_barrier
    """)


def gemv512_phase(a, srd_w, xsrc, wbuf, xregs, acc, tmp, issue_extra=None):
    gemv512_xload(a, xsrc, xregs)
    gemv512_wloads(a, srd_w, wbuf)
    nextra = issue_extra() if issue_extra is not None else 0
    gemv512_compute(a, wbuf, xregs, acc, tmp, nextra)


S_PW = 88


def proj_addr(a, v_off):
    a(f"""
    s_and_b32 s{S_T1}, s{S_WAVE}, 3
    s_lshr_b32 s{S_T2}, s{S_WAVE}, 2
    v_lshlrev_b32 v{v_off}, 14, v{V_G}
    v_lshlrev_b32 v{V_T2}, 4, v{V_L15}
    v_add_u32 v{v_off}, v{v_off}, v{V_T2}
    s_lshl_b32 s{S_PW}, s{S_T2}, 16
    s_lshl_b32 s{S_T3}, s{S_T1}, 8
    s_add_u32 s{S_PW}, s{S_PW}, s{S_T3}
    s_add_u32 s{S_PW + 1}, s{S_PW}, 4096
    s_add_u32 s{S_PW + 2}, s{S_PW}, 8192
    s_add_u32 s{S_PW + 3}, s{S_PW}, 12288
    """)


def proj_load(a, srd_w, v_off, wbuf, i):
    a(f"buffer_load_dwordx4 {vr(wbuf[i], 4)}, v{v_off}, {sr(srd_w, 4)}, s{S_PW + (i >> 2)} offen offset:{(i & 3) * 1024}")


def proj_compute(a, xlds, two_b, wbuf, xregs, acc, tmp, waits=True):
    a(f"""
    s_and_b32 s{S_T1}, s{S_WAVE}, 3
    s_lshr_b32 s{S_T2}, s{S_WAVE}, 2
    v_lshlrev_b32 v{V_T0}, 5, v{V_G}
    s_lshl_b32 s{S_T0}, s{S_T2}, 7
    v_add_u32 v{V_T0}, s{S_T0}, v{V_T0}
    """)
    if two_b:
        a(f"""
        v_lshrrev_b32 v{V_T1}, 3, v{V_L15}
        v_lshlrev_b32 v{V_T1}, 8, v{V_T1}
        v_add_u32 v{V_T0}, v{V_T0}, v{V_T1}
        """)
    a(f"""
    ds_read_b128 {vr(xregs, 4)}, v{V_T0} offset:{xlds}
    ds_read_b128 {vr(xregs + 4, 4)}, v{V_T0} offset:{xlds + 16}
    s_waitcnt lgkmcnt(0)
    """)
    for i in range(16):
        if waits:
            a(f"s_waitcnt vmcnt({15 - i})")
        delta_mfma(a, xregs, i, wbuf[i], acc, tmp, first=(i == 0))
    a(f"""
    v_lshrrev_b32 v{V_T0}, 1, v{V_G}
    v_lshlrev_b32 v{V_T0}, 11, v{V_T0}
    v_lshlrev_b32 v{V_T1}, 5, v{V_L15}
    v_add_u32 v{V_T0}, v{V_T0}, v{V_T1}
    v_and_b32 v{V_T1}, 1, v{V_G}
    v_lshlrev_b32 v{V_T1}, 4, v{V_T1}
    v_add_u32 v{V_T0}, v{V_T0}, v{V_T1}
    s_lshl_b32 s{S_T0}, s{S_T2}, 12
    s_lshl_b32 s{S_T3}, s{S_T1}, 9
    s_add_u32 s{S_T0}, s{S_T0}, s{S_T3}
    v_add_u32 v{V_T0}, s{S_T0}, v{V_T0}
    s_nop 7
    ds_write_b128 v{V_T0}, {vr(acc, 4)} offset:{L_YP}
    s_waitcnt lgkmcnt(0)
    s_barrier
    """)


def stamp(a, slot, wg=None):
    if "stamp" not in EXP:
        return
    skip = a.new("stamp")
    a(f"""
    s_cmp_lg_u32 s{S_WAVE}, 0
    s_cbranch_scc1 {skip}
    s_memrealtime s[92:93]
    s_lshl_b32 s94, s2, 5
    s_add_u32 s94, s94, {WS_END}
    s_add_u32 s96, s{P_WS}, s94
    s_addc_u32 s97, s{P_WS + 1}, 0
    s_mov_b32 s98, 32
    s_mov_b32 s99, 0x00020000
    s_waitcnt lgkmcnt(0)
    v_mov_b32 v10, s92
    v_mov_b32 v11, 0
    buffer_store_dword v10, v11, s[96:99], 0 offen offset:{slot * 4}
    """)
    a.label(skip)


SRD_DBG = 84
V_SY0, V_SY1 = 8, 9


def sync_arrive(a, cnt_off):
    skip = a.new("arr_skip")
    a(f"""
    s_waitcnt vmcnt(0) lgkmcnt(0)
    s_barrier
    s_cmp_lg_u32 s{S_WAVE}, 0
    s_cbranch_scc1 {skip}
    v_mov_b32 v{V_SY0}, 1
    v_mov_b32 v{V_SY1}, 0
    s_mov_b64 exec, 1
    buffer_atomic_add v{V_SY0}, v{V_SY1}, {sr(SRD_DBG, 4)}, 0 offen offset:{cnt_off}
    s_mov_b64 exec, -1
    """)
    a.label(skip)


def sync_wait(a, cnt_off, target):
    skip = a.new("sync_skip")
    poll = a.new("sync_poll")
    done = a.new("sync_done")
    a(f"""
    s_cmp_lg_u32 s{S_WAVE}, 0
    s_cbranch_scc1 {skip}
    v_mov_b32 v{V_SY1}, 0
    s_mov_b32 s{S_T5}, 0
    """)
    a.label(poll)
    a(f"""
    buffer_load_dword v{V_SY0}, v{V_SY1}, {sr(SRD_DBG, 4)}, 0 offen offset:{cnt_off} sc1
    s_add_u32 s{S_T5}, s{S_T5}, 1
    s_waitcnt vmcnt(0)
    v_readfirstlane_b32 s{S_T4}, v{V_SY0}
    s_cmp_ge_u32 s{S_T5}, 0x40000
    s_cbranch_scc1 {done}
    s_cmp_ge_u32 s{S_T4}, {target}
    s_cbranch_scc1 {done}
    s_sleep 1
    s_branch {poll}
    """)
    a.label(done)
    a.label(skip)
    a("s_barrier")


A_C = 32


def attnA_preload(a):
    a(f"""
    s_lshr_b32 s{S_B}, s2, 5
    s_and_b32 s{S_Q}, s2, 31
    s_lshl_b32 s{S_T0}, s{S_B}, 23
    s_lshl_b32 s{S_T1}, s{S_Q}, 18
    s_add_u32 s{S_OFF}, s{S_T0}, s{S_T1}
    """)
    make_srd(a, SRD4, P_CKV, S_OFF, 256 * 1024)
    a(f"""
    v_and_b32 v{V_T0}, 7, v{V_LANE}
    v_lshrrev_b32 v{V_T1}, 3, v{V_LANE}
    v_lshlrev_b32 v{V_T2}, 10, v{V_T1}
    v_lshlrev_b32 v{V_T3}, 4, v{V_T0}
    v_add_u32 v{V_T2}, v{V_T2}, v{V_T3}
    s_lshl_b32 s{S_T0}, s{S_WAVE}, 7
    v_add_u32 v31, s{S_T0}, v{V_T2}
    s_mov_b32 s{S_T0}, 0
    """)
    for t in range(8):
        for kk in range(4):
            a(f"buffer_load_dwordx4 {vr(A_C + 16 * t + 4 * kk, 4)}, v31, {sr(SRD4, 4)}, s{S_T0} offen nt")
            if not (t == 7 and kk == 3):
                a(f"s_add_u32 s{S_T0}, s{S_T0}, 8192")
    return 32


def stage_prepA(a):
    a(f"""
    s_lshr_b32 s{S_H}, s2, 1
    s_lshl_b32 s{S_OFF}, s{S_H}, 8
    """)
    make_srd(a, SRD0, P_AX, None, 2048)
    make_srd(a, SRD1, P_AWQ, S_OFF, 0)
    a(f"s_sub_u32 s{SRD1 + 2}, {512 * 8192}, s{S_OFF}")
    make_srd(a, SRD2, P_WUK, S_OFF, 0)
    a(f"s_sub_u32 s{SRD2 + 2}, {512 * 8192}, s{S_OFF}")
    make_srd_imm(a, SRD3, P_WS, WS_QP, 65536)
    wbuf = [160 + 4 * i for i in range(16)]
    ubuf = [224 + 4 * i for i in range(8)]
    QF = 160
    ACC = 176

    def extra():
        a(f"""
        v_lshlrev_b32 v30, 13, v{V_L15}
        v_lshlrev_b32 v{V_T2}, 4, v{V_G}
        v_add_u32 v30, v30, v{V_T2}
        s_and_b32 s{S_T1}, s2, 1
        s_lshl_b32 s{S_T1}, s{S_T1}, 21
        s_lshl_b32 s{S_T2}, s{S_WAVE}, 18
        s_add_u32 s{S_T1}, s{S_T1}, s{S_T2}
        s_add_u32 s{S_T2}, s{S_T1}, {16 * 8192}
        """)
        for t in range(2):
            for j in range(4):
                a(f"buffer_load_dwordx4 {vr(ubuf[t * 4 + j], 4)}, v30, {sr(SRD2, 4)}, s{S_T1 + t} offen offset:{64 * j}")
        return 8

    gemv512_phase(a, SRD1, ('global', SRD0), wbuf, 12, 20, 24, issue_extra=extra)
    a(f"""
    v_and_b32 v{V_T0}, 1, v{V_L15}
    v_lshlrev_b32 v{V_T0}, 8, v{V_T0}
    v_lshlrev_b32 v{V_T1}, 4, v{V_G}
    v_add_u32 v{V_T0}, v{V_T0}, v{V_T1}
    """)
    for j in range(4):
        a(f"ds_read_b128 {vr(QF + 4 * j, 4)}, v{V_T0} offset:{L_BF2 + 64 * j}")
    a(f"""
    v_lshlrev_b32 v{V_T0}, 15, v{V_L15}
    v_lshlrev_b32 v{V_T2}, 3, v{V_G}
    v_add_u32 v{V_T0}, v{V_T0}, v{V_T2}
    s_lshl_b32 s{S_T0}, s2, 9
    s_lshl_b32 s{S_T1}, s{S_WAVE}, 6
    s_add_u32 s{S_T0}, s{S_T0}, s{S_T1}
    v_add_u32 v{V_T0}, s{S_T0}, v{V_T0}
    s_waitcnt lgkmcnt(0) vmcnt(0)
    """)
    for t in range(2):
        acc = ACC + 4 * t
        for j in range(4):
            c = "0" if j == 0 else vr(acc, 4)
            a(f"v_mfma_f32_16x16x32_bf16 {vr(acc, 4)}, {vr(ubuf[t * 4 + j], 4)}, {vr(QF + 4 * j, 4)}, {c}")
    a("s_nop 7\ns_nop 3")
    a(f"v_cmp_gt_u32 vcc, 2, v{V_L15}\ns_and_saveexec_b64 {sr(S_SAVE, 2)}, vcc")
    for t in range(2):
        acc = ACC + 4 * t
        a(f"""
        v_cvt_pk_bf16_f32 v{16 + 2 * t}, v{acc}, v{acc + 1}
        v_cvt_pk_bf16_f32 v{17 + 2 * t}, v{acc + 2}, v{acc + 3}
        buffer_store_dwordx2 {vr(16 + 2 * t, 2)}, v{V_T0}, {sr(SRD3, 4)}, 0 offen offset:{32 * t} sc1
        """)
    a(f"s_mov_b64 exec, {sr(S_SAVE, 2)}")


def gen_B_role(a):
    DEPTH = 3
    KBUF = [64 + 32 * i for i in range(DEPTH)]
    VBUF = [80 + 32 * i for i in range(DEPTH)]
    WO = [160 + 4 * i for i in range(16)]
    QF = 32
    AT = 48
    V_S = 12
    V_O = 16
    V_PK = 20
    V_L, V_TM, V_M, V_NMC = 24, 25, 26, 27
    V_WOFF, V_OFFK, V_OFFV = 29, 30, 31
    S_CNT = 77
    NT = os.environ.get("KVPOL", " nt")
    WAITN = 8 * DEPTH - 4
    stamp(a, 0)
    a(f"""
    s_sub_u32 s{S_T0}, s2, {NA_WG}
    s_and_b32 s{S_T1}, s{S_T0}, 7
    s_lshr_b32 s{S_T2}, s{S_T0}, 3
    s_and_b32 s{S_T3}, s{S_T2}, 3
    s_lshl_b32 s{S_T3}, s{S_T3}, 3
    s_add_u32 s{S_H}, s{S_T1}, s{S_T3}
    s_lshr_b32 s{S_T2}, s{S_T2}, 2
    s_cmp_ge_u32 s{S_T2}, 3
    s_cselect_b32 s{S_B}, 1, 0
    s_mul_i32 s{S_T3}, s{S_B}, 3
    s_sub_u32 s{S_Q}, s{S_T2}, s{S_T3}
    """)
    a(f"""
    s_lshl_b32 s{S_T0}, s{S_B}, 5
    s_add_u32 s{S_T0}, s{S_T0}, s{S_H}
    s_lshl_b32 s{S_T0}, s{S_T0}, 21
    s_mul_i32 s{S_T1}, s{S_Q}, {171 * 4096}
    s_add_u32 s{S_T0}, s{S_T0}, s{S_T1}
    s_lshl_b32 s{S_T1}, s{S_WAVE}, 12
    s_add_u32 s{S_OFF}, s{S_T0}, s{S_T1}
    s_cmp_eq_u32 s{S_Q}, 2
    s_cselect_b32 s{S_T2}, 1, 0
    s_sub_u32 s{S_T2}, 171, s{S_T2}
    s_sub_u32 s{S_T2}, s{S_T2}, s{S_WAVE}
    s_add_u32 s{S_CNT}, s{S_T2}, 7
    s_lshr_b32 s{S_CNT}, s{S_CNT}, 3
    """)
    make_srd(a, SRD0, P_BK, S_OFF, 0)
    make_srd(a, SRD1, P_BV, S_OFF, 0)
    a(f"s_lshl_b32 s{SRD0 + 2}, s{S_T2}, 12\ns_lshl_b32 s{SRD1 + 2}, s{S_T2}, 12")
    make_srd(a, SRD2, P_BX, None, 2048)
    a(f"s_lshl_b32 s{S_OFF}, s{S_H}, 8")
    make_srd(a, SRD3, P_BWQ, S_OFF, 0)
    a(f"s_sub_u32 s{SRD3 + 2}, {512 * 8192}, s{S_OFF}")
    a(f"s_lshl_b32 s{S_OFF}, s{S_H}, 17")
    make_srd(a, SRD4, P_BWO, S_OFF, 131072)
    a(f"""
    v_lshlrev_b32 v{V_OFFK}, 8, v{V_L15}
    v_lshlrev_b32 v{V_T0}, 4, v{V_G}
    v_add_u32 v{V_OFFK}, v{V_OFFK}, v{V_T0}
    v_lshlrev_b32 v{V_OFFV}, 10, v{V_G}
    v_lshlrev_b32 v{V_T0}, 4, v{V_L15}
    v_add_u32 v{V_OFFV}, v{V_OFFV}, v{V_T0}
    """)
    proj_addr(a, V_WOFF)

    def loadK(buf, soff):
        for j in range(4):
            a(f"buffer_load_dwordx4 {vr(buf + 4 * j, 4)}, v{V_OFFV}, {sr(SRD0, 4)}, {soff} offen offset:{256 * j}{NT}")

    def loadV(buf, soff):
        for i in range(4):
            a(f"buffer_load_dwordx4 {vr(buf + 4 * i, 4)}, v{V_OFFV}, {sr(SRD1, 4)}, {soff} offen offset:{256 * i}{NT}")

    def extra():
        a(f"s_mov_b32 s{S_LOOP}, 0")
        for d in range(DEPTH):
            loadK(KBUF[d], f"s{S_LOOP}")
            loadV(VBUF[d], f"s{S_LOOP}")
            a(f"s_add_u32 s{S_LOOP}, s{S_LOOP}, 32768")
        return 8 * DEPTH

    gemv512_phase(a, SRD3, ('global', SRD2), WO, 12, 20, 24, issue_extra=extra)
    for i in range(16):
        proj_load(a, SRD4, V_WOFF, WO, i)
    a(f"""
    v_lshlrev_b32 v{V_T0}, 4, v{V_L15}
    s_lshl_b32 s{S_T0}, s{S_B}, 8
    v_add_u32 v{V_T0}, s{S_T0}, v{V_T0}
    ds_read_b128 {vr(QF, 4)}, v{V_T0} offset:{L_BF2}
    """)
    a(f"""
    v_mov_b32 v{V_L}, 0
    v_mov_b32 v{V_M}, 0xff800000
    v_mov_b32 v{V_NMC}, 0
    v_mov_b32 v{V_O}, 0
    v_mov_b32 v{V_O + 1}, 0
    v_mov_b32 v{V_O + 2}, 0
    v_mov_b32 v{V_O + 3}, 0
    s_waitcnt lgkmcnt(0)
    """)
    rare_blocks = []
    stamp(a, 1)

    def tile(K, V):
        rare = a.new("brare")
        back = a.new("bback")
        a(f"s_waitcnt vmcnt({WAITN})")
        for j in range(4):
            for i in range(4):
                c = "0" if j == 0 else f"v{V_S + i}"
                a(f"v_dot2_f32_bf16 v{V_S + i}, v{K + 4 * i + j}, v{QF + j}, {c}")
        loadK(K, f"s{S_LOOP}")
        for r in (8, 4, 2, 1):
            for i in range(4):
                a(f"v_add_f32_dpp v{V_S + i}, v{V_S + i}, v{V_S + i} row_ror:{r} row_mask:0xf bank_mask:0xf")
        a(f"""
        v_max3_f32 v{V_TM}, v{V_S}, v{V_S + 1}, v{V_S + 2}
        v_max_f32 v{V_TM}, v{V_TM}, v{V_S + 3}
        v_cmp_gt_f32 vcc, v{V_TM}, v{V_M}
        s_cbranch_vccnz {rare}
        """)
        a.label(back)
        for i in range(4):
            a(f"v_fma_f32 v{V_S + i}, v{V_S + i}, s{S_C}, v{V_NMC}")
        for i in range(4):
            a(f"v_exp_f32 v{V_S + i}, v{V_S + i}")
        a("s_nop 0")
        for i in range(4):
            a(f"v_cvt_pk_bf16_f32 v{V_PK + i}, v{V_S + i}, v{V_S + i}")
        a(f"""
        v_add_f32 v{V_S}, v{V_S}, v{V_S + 1}
        v_add_f32 v{V_S + 2}, v{V_S + 2}, v{V_S + 3}
        v_add_f32 v{V_L}, v{V_L}, v{V_S}
        v_add_f32 v{V_L}, v{V_L}, v{V_S + 2}
        """)
        for i in range(4):
            for j in range(4):
                a(f"v_and_b32 v{AT + 4 * i + j}, v{V_PK + i}, v{V_MASK + j}")
        a(f"s_waitcnt vmcnt({WAITN})")
        for i in range(4):
            a(f"v_mfma_f32_16x16x32_bf16 {vr(V_O, 4)}, {vr(AT + 4 * i, 4)}, {vr(V + 4 * i, 4)}, {vr(V_O, 4)}")
        loadV(V, f"s{S_LOOP}")
        a(f"s_add_u32 s{S_LOOP}, s{S_LOOP}, 32768")
        a(f"s_sub_u32 s{S_CNT}, s{S_CNT}, 1\ns_cmp_eq_u32 s{S_CNT}, 0")
        rare_blocks.append((rare, back))

    loop = a.new("bloop")
    done = a.new("bdone")
    a.label(loop)
    for d in range(DEPTH):
        tile(KBUF[d], VBUF[d])
        if d != DEPTH - 1:
            a(f"s_cbranch_scc1 {done}")
        else:
            a(f"s_cbranch_scc0 {loop}")
    a(f"s_branch {done}")
    for rare, back in rare_blocks:
        a.label(rare)
        a(f"""
        v_readlane_b32 s{S_R2}, v{V_TM}, 0
        v_readlane_b32 s{S_R3}, v{V_TM}, 16
        v_readlane_b32 s{S_T4}, v{V_TM}, 32
        v_readlane_b32 s{S_T5}, v{V_TM}, 48
        s_nop 1
        v_max_f32 v{V_TM}, s{S_R2}, v{V_M}
        v_max_f32 v{V_TM}, s{S_R3}, v{V_TM}
        v_max_f32 v{V_TM}, s{S_T4}, v{V_TM}
        v_max_f32 v{V_TM}, s{S_T5}, v{V_TM}
        v_sub_f32 v{V_T0}, v{V_M}, v{V_TM}
        v_mul_f32 v{V_T0}, s{S_C}, v{V_T0}
        v_exp_f32 v{V_T0}, v{V_T0}
        v_mov_b32 v{V_M}, v{V_TM}
        v_mul_f32 v{V_NMC}, s{S_C}, v{V_TM}
        v_sub_f32 v{V_NMC}, 0, v{V_NMC}
        v_mul_f32 v{V_L}, v{V_L}, v{V_T0}
        v_mul_f32 v{V_O}, v{V_O}, v{V_T0}
        v_mul_f32 v{V_O + 1}, v{V_O + 1}, v{V_T0}
        v_mul_f32 v{V_O + 2}, v{V_O + 2}, v{V_T0}
        v_mul_f32 v{V_O + 3}, v{V_O + 3}, v{V_T0}
        s_branch {back}
        """)
    a.label(done)
    a(f"""
    s_nop 7
    v_readlane_b32 s{S_R2}, v{V_L}, 0
    v_readlane_b32 s{S_R3}, v{V_L}, 16
    v_readlane_b32 s{S_T4}, v{V_L}, 32
    v_readlane_b32 s{S_T5}, v{V_L}, 48
    s_nop 1
    v_mov_b32 v{V_L}, s{S_R2}
    v_add_f32 v{V_L}, s{S_R3}, v{V_L}
    v_add_f32 v{V_L}, s{S_T4}, v{V_L}
    v_add_f32 v{V_NMC}, s{S_T5}, v{V_L}
    v_lshlrev_b32 v{V_T0}, 5, v{V_L15}
    v_lshlrev_b32 v{V_T1}, 4, v{V_G}
    v_add_u32 v{V_T0}, v{V_T0}, v{V_T1}
    s_lshl_b32 s{S_T0}, s{S_WAVE}, 9
    v_add_u32 v{V_T0}, s{S_T0}, v{V_T0}
    s_lshl_b32 s{S_T0}, s{S_WAVE}, 3
    v_mov_b32 v{V_T1}, s{S_T0}
    v_cmp_gt_u32 vcc, 32, v{V_LANE}
    s_and_saveexec_b64 {sr(S_SAVE, 2)}, vcc
    ds_write_b128 v{V_T0}, {vr(V_O, 4)} offset:{L_PART}
    ds_write_b64 v{V_T1}, {vr(V_M, 2)} offset:{L_STAT}
    s_mov_b64 exec, {sr(S_SAVE, 2)}
    s_waitcnt lgkmcnt(0)
    s_barrier
    """)
    ST = 32
    a(f"v_mov_b32 v{V_T0}, 0")
    for k in range(4):
        a(f"ds_read_b128 {vr(ST + 4 * k, 4)}, v{V_T0} offset:{L_STAT + 16 * k}")
    a(f"""
    v_and_b32 v{V_T1}, 127, v{V_TID}
    v_lshlrev_b32 v{V_T2}, 2, v{V_T1}
    """)
    for w in range(8):
        a(f"ds_read_b32 v{48 + w}, v{V_T2} offset:{L_PART + 512 * w}")
    a("s_waitcnt lgkmcnt(0)")
    MG = 56
    a(f"""
    v_max3_f32 v{MG}, v{ST}, v{ST + 2}, v{ST + 4}
    v_max3_f32 v{MG}, v{MG}, v{ST + 6}, v{ST + 8}
    v_max3_f32 v{MG}, v{MG}, v{ST + 10}, v{ST + 12}
    v_max_f32 v{MG}, v{MG}, v{ST + 14}
    """)
    for w in range(8):
        a(f"""
        v_sub_f32 v{ST + 2 * w}, v{ST + 2 * w}, v{MG}
        v_mul_f32 v{ST + 2 * w}, s{S_C}, v{ST + 2 * w}
        v_exp_f32 v{ST + 2 * w}, v{ST + 2 * w}
        """)
    LG = 57
    a(f"s_nop 0\nv_mul_f32 v{LG}, v{ST}, v{ST + 1}\nv_mul_f32 v58, v{ST}, v48")
    for w in range(1, 8):
        a(f"v_fmac_f32 v{LG}, v{ST + 2 * w}, v{ST + 2 * w + 1}")
        a(f"v_fmac_f32 v58, v{ST + 2 * w}, v{48 + w}")
    a(f"""
    v_cvt_pk_bf16_f32 v58, v58, v58
    v_lshlrev_b32 v{V_T1}, 1, v{V_T1}
    ds_write_b16 v{V_T1}, v58 offset:{L_BF}
    s_waitcnt lgkmcnt(0) vmcnt(0)
    s_barrier
    """)
    stamp(a, 2)
    proj_compute(a, L_BF, False, WO, 12, 20, 24, waits=False)
    stamp(a, 3)
    a(f"""
    s_lshl_b32 s{S_T0}, s{S_B}, 5
    s_add_u32 s{S_T0}, s{S_T0}, s{S_H}
    s_lshl_b32 s{S_T0}, s{S_T0}, 2
    s_add_u32 s{S_T0}, s{S_T0}, s{S_Q}
    s_lshl_b32 s{S_OFF}, s{S_T0}, 11
    s_add_u32 s{S_OFF}, s{S_OFF}, {WS_YB}
    """)
    make_srd(a, SRD3, P_WS, S_OFF, 2048)
    a(f"""
    s_lshl_b32 s{S_OFF}, s{S_T0}, 3
    s_add_u32 s{S_OFF}, s{S_OFF}, {WS_BSTAT}
    """)
    make_srd(a, SRD4, P_WS, S_OFF, 8)
    a(f"""
    v_lshlrev_b32 v{V_T0}, 2, v{V_TID}
    ds_read_b32 v{V_T1}, v{V_T0} offset:{L_YP}
    ds_read_b32 v{V_T2}, v{V_T0} offset:{L_YP + 4096}
    s_waitcnt lgkmcnt(0)
    v_add_f32 v{V_T1}, v{V_T1}, v{V_T2}
    buffer_store_dword v{V_T1}, v{V_T0}, {sr(SRD3, 4)}, 0 offen
    v_lshlrev_b32 v{V_T0}, 3, v{V_TID}
    buffer_store_dwordx2 {vr(MG, 2)}, v{V_T0}, {sr(SRD4, 4)}, 0 offen
    s_endpgm
    """)


LA_X = 0
LA_S = 65536
LA_T = 73728
LA_ROW = 144
LA_TILE = 32 * LA_ROW
LA_END = LA_T + 8 * 2 * LA_TILE


def stage_attnA(a):
    QF = 160
    ACC = 176
    V_S = 208
    TX = 240
    V_P = 8
    V_WT, V_XW, V_XR, V_TR, V_M = 3, 4, 5, 6, 7
    V_AF = 24
    V_L, V_NMC, V_TM, V_RS = 252, 253, 254, 255
    a(f"s_lshl_b32 s{S_OFF}, s{S_B}, 15")
    make_srd(a, SRD1, P_WS, S_OFF, 32768)
    a(f"""
    v_and_b32 v{V_T0}, 31, v{V_LANE}
    v_lshrrev_b32 v{V_T1}, 5, v{V_LANE}
    v_lshlrev_b32 v{V_T3}, 4, v{V_T1}
    v_lshlrev_b32 v{V_T2}, 10, v{V_T0}
    v_add_u32 v{V_T2}, v{V_T2}, v{V_T3}
    s_lshl_b32 s{S_T0}, s{S_WAVE}, 7
    v_add_u32 v{V_T2}, s{S_T0}, v{V_T2}
    """)
    for kk in range(4):
        a(f"buffer_load_dwordx4 {vr(QF + 4 * kk, 4)}, v{V_T2}, {sr(SRD1, 4)}, 0 offen offset:{32 * kk} sc1")
    a(f"""
    s_mul_i32 s{S_T0}, s{S_WAVE}, {2 * LA_TILE}
    s_add_u32 s{S_T0}, s{S_T0}, {LA_T}
    v_mul_u32_u24 v{V_AF}, {LA_ROW}, v{V_T0}
    v_add_u32 v{V_AF}, v{V_AF}, v{V_T3}
    v_add_u32 v{V_AF}, s{S_T0}, v{V_AF}
    v_lshrrev_b32 v13, 3, v{V_LANE}
    v_mul_u32_u24 v13, {LA_ROW}, v13
    v_and_b32 v14, 7, v{V_LANE}
    v_lshlrev_b32 v14, 4, v14
    v_add_u32 v13, v13, v14
    v_add_u32 v13, s{S_T0}, v13
    v_lshlrev_b32 v14, 4, v{V_LANE}
    s_lshl_b32 s{S_T1}, s{S_WAVE}, 13
    v_add_u32 v15, s{S_T1}, v14
    s_lshr_b32 s{S_T1}, s{S_WAVE}, 1
    s_lshl_b32 s{S_T1}, s{S_T1}, 10
    s_and_b32 s{S_T2}, s{S_WAVE}, 1
    s_lshl_b32 s{S_T2}, s{S_T2}, 3
    s_add_u32 s{S_T1}, s{S_T1}, s{S_T2}
    v_add_u32 v{V_RS}, s{S_T1}, v14
    """)
    a(f"""
    v_lshrrev_b32 v{V_T0}, 1, v{V_G}
    v_lshlrev_b32 v{V_T0}, 2, v{V_T0}
    v_lshrrev_b32 v{V_T1}, 2, v{V_L15}
    v_add_u32 v{V_T0}, v{V_T0}, v{V_T1}
    v_mul_u32_u24 v{V_T0}, {LA_ROW}, v{V_T0}
    v_and_b32 v{V_T1}, 1, v{V_G}
    v_lshlrev_b32 v{V_T1}, 5, v{V_T1}
    v_add_u32 v{V_T0}, v{V_T0}, v{V_T1}
    v_and_b32 v{V_T1}, 3, v{V_L15}
    v_lshlrev_b32 v{V_T1}, 3, v{V_T1}
    v_add_u32 v{V_T0}, v{V_T0}, v{V_T1}
    v_add_u32 v{V_TR}, s{S_T0}, v{V_T0}
    v_mov_b32 v{V_WT}, v13
    v_add_u32 v{V_XR}, {LA_S}, v14
    v_add_u32 v25, {LA_S}, v{V_RS}
    v_mov_b32 v{V_XW}, v15
    v_mov_b32 v{V_M}, 0xff800000
    v_mov_b32 v{V_L}, 0
    v_mov_b32 v{V_NMC}, 0
    """)
    for i in range(32):
        a(f"v_mov_b32 v{ACC + i}, 0")
    a("s_waitcnt vmcnt(0)")
    stamp(a, 6)
    rare_blocks = []

    def rnd(C):
        rare = a.new("arare")
        back = a.new("aback")
        for tl in range(2):
            for kk in range(4):
                a(f"ds_write_b128 v{V_WT}, {vr(C + 16 * tl + 4 * kk, 4)} offset:{tl * LA_TILE + kk * 8 * LA_ROW}")
        a("s_waitcnt lgkmcnt(0)")
        for tl in range(2):
            for kk in range(4):
                a(f"ds_read_b128 {vr(V_P + 4 * kk, 4)}, v{V_AF} offset:{tl * LA_TILE + 32 * kk}")
            for kk in range(4):
                a(f"s_waitcnt lgkmcnt({3 - kk})")
                c = "0" if kk == 0 else vr(V_S + 16 * tl, 16)
                a(f"v_mfma_f32_32x32x16_bf16 {vr(V_S + 16 * tl, 16)}, {vr(V_P + 4 * kk, 4)}, {vr(QF + 4 * kk, 4)}, {c}")
        a("s_nop 7")
        for q in range(4):
            a(f"ds_write_b128 v{V_XW}, {vr(V_S + 4 * q, 4)} offset:{LA_X + q * 1024}")
        a("s_nop 3")
        for q in range(4):
            a(f"ds_write_b128 v{V_XW}, {vr(V_S + 16 + 4 * q, 4)} offset:{LA_X + 4096 + q * 1024}")
        a("s_waitcnt lgkmcnt(0)")
        a("s_barrier")
        for tl in range(2):
            for w in range(8):
                a(f"ds_read_b64 {vr(V_S + 16 * tl + 2 * w, 2)}, v{V_RS} offset:{LA_X + w * 8192 + tl * 4096}")
        for tl in range(2):
            for w in range(1, 8):
                a(f"s_waitcnt lgkmcnt({15 - 8 * tl - w})")
                a(f"v_add_f32 v{V_S + 16 * tl}, v{V_S + 16 * tl}, v{V_S + 16 * tl + 2 * w}")
                a(f"v_add_f32 v{V_S + 16 * tl + 1}, v{V_S + 16 * tl + 1}, v{V_S + 16 * tl + 2 * w + 1}")
        a(f"""
        ds_write_b64 v25, {vr(V_S, 2)}
        ds_write_b64 v25, {vr(V_S + 16, 2)} offset:4096
        s_waitcnt lgkmcnt(0)
        s_barrier
        """)
        for q in range(8):
            a(f"ds_read_b128 {vr(V_S + 4 * q, 4)}, v{V_XR} offset:{q * 1024}")
        units = [(tl, ct, kh) for tl in range(2) for kh in range(2) for ct in range(2)]

        def trread(u):
            tl, ct, kh = units[u]
            t = TX + 4 * (u % 3)
            base = tl * LA_TILE + (kh * 16) * LA_ROW + ct * 64
            a(f"ds_read_b64_tr_b16 {vr(t, 2)}, v{V_TR} offset:{base}")
            a(f"ds_read_b64_tr_b16 {vr(t + 2, 2)}, v{V_TR} offset:{base + 8 * LA_ROW}")
        for u in range(3):
            trread(u)
        a("s_waitcnt lgkmcnt(6)")
        a(f"v_max3_f32 v{V_TM}, v{V_S}, v{V_S + 1}, v{V_S + 2}")
        for k in range(3, 31, 2):
            a(f"v_max3_f32 v{V_TM}, v{V_TM}, v{V_S + k}, v{V_S + k + 1}")
        a(f"""
        v_max_f32 v{V_TM}, v{V_TM}, v{V_S + 31}
        v_cmp_gt_f32 vcc, v{V_TM}, v{V_M}
        s_cbranch_vccnz {rare}
        """)
        a.label(back)
        for i in range(32):
            a(f"v_fma_f32 v{V_S + i}, v{V_S + i}, s{S_C}, v{V_NMC}")
        for i in range(32):
            a(f"v_exp_f32 v{V_S + i}, v{V_S + i}")
        a("s_nop 0")
        for i in range(16):
            a(f"v_cvt_pk_bf16_f32 v{V_P + i}, v{V_S + 2 * i}, v{V_S + 2 * i + 1}")
        a("s_nop 1")
        adds = []
        for st in (1, 2, 4, 8, 16):
            for i in range(0, 32, 2 * st):
                adds.append(f"v_add_f32 v{V_S + i}, v{V_S + i}, v{V_S + i + st}")
        adds.append(f"v_add_f32 v{V_L}, v{V_L}, v{V_S}")
        for u in range(8):
            tl, ct, kh = units[u]
            t = TX + 4 * (u % 3)
            a(f"s_waitcnt lgkmcnt({2 * min(2, 7 - u)})")
            a(f"v_mfma_f32_32x32x16_bf16 {vr(ACC + 16 * ct, 16)}, {vr(t, 4)}, {vr(V_P + 8 * tl + 4 * kh, 4)}, {vr(ACC + 16 * ct, 16)}")
            if u + 3 < 8:
                trread(u + 3)
            for x in adds[4 * u: 4 * u + 4]:
                a(x)
        rare_blocks.append((rare, back))

    for r in range(4):
        rnd(A_C + 32 * r)
        if r == 0:
            stamp(a, 7)
    done = a.new("adone")
    a(f"s_branch {done}")
    for rare, back in rare_blocks:
        a.label(rare)
        a(f"""
        v_mov_b32 v{V_P}, v{V_TM}
        v_mov_b32 v{V_P + 1}, v{V_TM}
        s_nop 1
        v_permlane32_swap_b32 v{V_P}, v{V_P + 1}
        s_nop 1
        v_max3_f32 v{V_TM}, v{V_P}, v{V_P + 1}, v{V_M}
        v_sub_f32 v{V_P}, v{V_M}, v{V_TM}
        v_mul_f32 v{V_P}, s{S_C}, v{V_P}
        v_exp_f32 v{V_P}, v{V_P}
        v_mov_b32 v{V_M}, v{V_TM}
        v_mul_f32 v{V_NMC}, s{S_C}, v{V_TM}
        v_sub_f32 v{V_NMC}, 0, v{V_NMC}
        v_mul_f32 v{V_L}, v{V_L}, v{V_P}
        """)
        for i in range(32):
            a(f"v_mul_f32 v{ACC + i}, v{ACC + i}, v{V_P}")
        a(f"s_branch {back}")
    a.label(done)
    a(f"""
    s_lshl_b32 s{S_T0}, s2, 16
    s_add_u32 s{S_OFF}, s{S_T0}, {WS_APART}
    """)
    make_srd(a, SRD2, P_WS, S_OFF, 65536)
    a(f"""
    s_lshl_b32 s{S_T0}, s{S_B}, 13
    s_lshl_b32 s{S_T1}, s{S_Q}, 3
    s_add_u32 s{S_T0}, s{S_T0}, s{S_T1}
    s_add_u32 s{S_OFF}, s{S_T0}, {WS_ASTAT}
    """)
    make_srd(a, SRD3, P_WS, S_OFF, 8192 - 248)
    a(f"""
    s_mul_i32 s{S_T0}, s{S_WAVE}, {2 * LA_TILE}
    s_add_u32 s{S_T0}, s{S_T0}, {LA_T}
    v_and_b32 v{TX}, 31, v{V_LANE}
    v_lshrrev_b32 v{TX + 1}, 5, v{V_LANE}
    v_mul_u32_u24 v{TX + 2}, 272, v{TX}
    v_lshlrev_b32 v{TX + 1}, 4, v{TX + 1}
    v_add_u32 v{TX + 2}, v{TX + 2}, v{TX + 1}
    v_add_u32 v{TX + 2}, s{S_T0}, v{TX + 2}
    v_lshrrev_b32 v{TX + 3}, 4, v{V_LANE}
    v_and_b32 v{TX + 4}, 15, v{V_LANE}
    v_lshlrev_b32 v{TX + 4}, 4, v{TX + 4}
    v_mul_u32_u24 v{TX + 5}, 272, v{TX + 3}
    v_add_u32 v{TX + 5}, v{TX + 5}, v{TX + 4}
    v_add_u32 v{TX + 5}, s{S_T0}, v{TX + 5}
    v_lshlrev_b32 v{TX + 6}, 11, v{TX + 3}
    v_add_u32 v{TX + 6}, v{TX + 6}, v{TX + 4}
    s_lshl_b32 s{S_T0}, s{S_WAVE}, 8
    v_add_u32 v{TX + 6}, s{S_T0}, v{TX + 6}
    s_nop 7
    s_nop 3
    """)
    for ct in range(2):
        for q4 in range(4):
            a(f"ds_write_b128 v{TX + 2}, {vr(ACC + 16 * ct + 4 * q4, 4)} offset:{ct * 128 + q4 * 32}")
    a("s_waitcnt lgkmcnt(0)")
    for j in range(8):
        a(f"ds_read_b128 {vr(ACC + 4 * j, 4)}, v{TX + 5} offset:{j * 4 * 272}")
    a(f"s_mov_b32 s{S_T0}, 0")
    for j in range(8):
        a(f"s_waitcnt lgkmcnt({7 - j})")
        a(f"buffer_store_dwordx4 {vr(ACC + 4 * j, 4)}, v{TX + 6}, {sr(SRD2, 4)}, s{S_T0} offen sc1")
        if j != 7:
            a(f"s_add_u32 s{S_T0}, s{S_T0}, 8192")
    a(f"""
    v_mov_b32 v{TX + 8}, v{V_L}
    v_mov_b32 v{TX + 9}, v{V_L}
    s_nop 1
    v_permlane32_swap_b32 v{TX + 8}, v{TX + 9}
    s_nop 1
    v_add_f32 v{TX + 11}, v{TX + 8}, v{TX + 9}
    v_mov_b32 v{TX + 10}, v{V_M}
    v_lshlrev_b32 v{TX + 3}, 8, v{V_TID}
    buffer_store_dwordx2 {vr(TX + 10, 2)}, v{TX + 3}, {sr(SRD3, 4)}, 0 offen sc1
    """)


F_WUV = [128 + 4 * i for i in range(16)]
F_WO = [192 + 4 * i for i in range(16)]


def finishA_prefetch(a):
    a(f"""
    s_and_b32 s{S_H}, s2, 31
    s_lshr_b32 s{S_B}, s2, 5
    s_lshl_b32 s{S_OFF}, s{S_H}, 8
    """)
    make_srd(a, SRD2, P_WUV, S_OFF, 0)
    a(f"s_sub_u32 s{SRD2 + 2}, {512 * 8192}, s{S_OFF}")
    a(f"s_lshl_b32 s{S_OFF}, s{S_H}, 17")
    make_srd(a, SRD3, P_AWO, S_OFF, 131072)
    gemv512_wloads(a, SRD2, F_WUV)
    proj_addr(a, 31)
    for i in range(16):
        proj_load(a, SRD3, 31, F_WO, i)


def stage_finishA(a):
    a(f"""
    s_lshl_b32 s{S_T0}, s{S_B}, 21
    s_lshl_b32 s{S_T1}, s{S_H}, 11
    s_add_u32 s{S_T0}, s{S_T0}, s{S_T1}
    s_add_u32 s{S_OFF}, s{S_T0}, {WS_APART}
    """)
    make_srd(a, SRD0, P_WS, S_OFF, 31 * 65536 + 2048)
    a(f"""
    s_lshl_b32 s{S_T0}, s{S_B}, 13
    s_lshl_b32 s{S_T1}, s{S_H}, 8
    s_add_u32 s{S_T0}, s{S_T0}, s{S_T1}
    s_add_u32 s{S_OFF}, s{S_T0}, {WS_ASTAT}
    """)
    make_srd(a, SRD1, P_WS, S_OFF, 256)
    a(f"""
    s_lshl_b32 s{S_T0}, s{S_H}, 12
    s_lshl_b32 s{S_T1}, s{S_B}, 11
    s_add_u32 s{S_T0}, s{S_T0}, s{S_T1}
    s_add_u32 s{S_OFF}, s{S_T0}, {WS_YA}
    """)
    make_srd(a, SRD4, P_WS, S_OFF, 2048)
    STAT = 32
    PART = 96
    a(f"""
    v_lshrrev_b32 v{V_T0}, 7, v{V_TID}
    v_and_b32 v{V_T1}, 127, v{V_TID}
    v_lshlrev_b32 v{V_T2}, 19, v{V_T0}
    v_lshlrev_b32 v{V_T3}, 4, v{V_T1}
    v_add_u32 v{V_T2}, v{V_T2}, v{V_T3}
    v_mov_b32 v{V_T3}, 0
    s_mov_b32 s{S_T0}, 0
    """)
    for k in range(16):
        a(f"buffer_load_dwordx4 {vr(STAT + 4 * k, 4)}, v{V_T3}, {sr(SRD1, 4)}, 0 offen offset:{16 * k} sc1")
    for k in range(8):
        a(f"buffer_load_dwordx4 {vr(PART + 4 * k, 4)}, v{V_T2}, {sr(SRD0, 4)}, s{S_T0} offen sc1")
        if k != 7:
            a(f"s_add_u32 s{S_T0}, s{S_T0}, 65536")
    a("s_waitcnt vmcnt(8)")
    MG, LG = 12, 13
    a(f"v_max_f32 v{MG}, v{STAT}, v{STAT + 2}")
    for k in range(2, 32, 2):
        a(f"v_max3_f32 v{MG}, v{MG}, v{STAT + 2 * k}, v{STAT + 2 * k + 2}")
    for k in range(32):
        a(f"""
        v_sub_f32 v{STAT + 2 * k}, v{STAT + 2 * k}, v{MG}
        v_mul_f32 v{STAT + 2 * k}, s{S_C}, v{STAT + 2 * k}
        v_exp_f32 v{STAT + 2 * k}, v{STAT + 2 * k}
        """)
    a(f"s_nop 0\nv_mul_f32 v{LG}, v{STAT}, v{STAT + 1}")
    for k in range(1, 32):
        a(f"v_fmac_f32 v{LG}, v{STAT + 2 * k}, v{STAT + 2 * k + 1}")
    a(f"v_rcp_f32 v{LG}, v{LG}")
    a(f"s_lshr_b32 s{S_T1}, s{S_WAVE}, 1")
    for g in range(4):
        a(f"s_cmp_eq_u32 s{S_T1}, {g}\ns_cselect_b64 vcc, -1, 0")
        for k in range(8):
            if g == 0:
                a(f"v_mov_b32 v{16 + k}, v{STAT + 2 * k}")
            else:
                a(f"v_cndmask_b32 v{16 + k}, v{16 + k}, v{STAT + 2 * (8 * g + k)}, vcc")
    a("s_waitcnt vmcnt(0)")
    for i in range(4):
        a(f"v_mul_f32 v{24 + i}, v16, v{PART + i}")
    for k in range(1, 8):
        for i in range(4):
            a(f"v_fmac_f32 v{24 + i}, v{16 + k}, v{PART + 4 * k + i}")
    for i in range(4):
        a(f"v_mul_f32 v{24 + i}, v{24 + i}, v{LG}")
    a(f"""
    v_lshlrev_b32 v{V_T0}, 4, v{V_TID}
    ds_write_b128 v{V_T0}, {vr(24, 4)} offset:{L_YP}
    s_waitcnt lgkmcnt(0)
    s_barrier
    v_and_b32 v{V_T1}, 255, v{V_TID}
    v_lshlrev_b32 v{V_T0}, 3, v{V_T1}
    ds_read_b64 {vr(16, 2)}, v{V_T0} offset:{L_YP}
    ds_read_b64 {vr(18, 2)}, v{V_T0} offset:{L_YP + 2048}
    ds_read_b64 {vr(20, 2)}, v{V_T0} offset:{L_YP + 4096}
    ds_read_b64 {vr(22, 2)}, v{V_T0} offset:{L_YP + 6144}
    s_waitcnt lgkmcnt(0)
    v_add_f32 v16, v16, v18
    v_add_f32 v17, v17, v19
    v_add_f32 v20, v20, v22
    v_add_f32 v21, v21, v23
    v_add_f32 v16, v16, v20
    v_add_f32 v17, v17, v21
    v_cvt_pk_bf16_f32 v16, v16, v17
    v_lshlrev_b32 v{V_T0}, 2, v{V_TID}
    ds_write_b32 v{V_T0}, v16 offset:{L_BF}
    s_waitcnt lgkmcnt(0)
    s_barrier
    """)
    gemv512_xload(a, ('lds', L_BF), 16)
    gemv512_compute(a, F_WUV, 16, 24, 28, None)
    proj_compute(a, L_BF2, True, F_WO, 16, 24, 28, waits=False)
    a(f"""
    v_lshlrev_b32 v{V_T0}, 2, v{V_TID}
    ds_read_b32 v12, v{V_T0} offset:{L_YP}
    ds_read_b32 v13, v{V_T0} offset:{L_YP + 4096}
    s_waitcnt lgkmcnt(0)
    v_add_f32 v12, v12, v13
    buffer_store_dword v12, v{V_T0}, {sr(SRD4, 4)}, 0 offen sc1
    """)


def gen_main(a):
    a.raw(".p2align 8")
    a.label("main_kernel")
    a(f"s_cmp_ge_u32 s2, {NA_WG + NB_WG}\ns_cbranch_scc1 L_main_end")
    load_kernargs(a)
    lane_setup(a)
    make_masks(a)
    perm_consts(a)
    a("s_waitcnt lgkmcnt(0)")
    a(f"s_cmp_lt_u32 s2, {NA_WG}\ns_cbranch_scc1 L_main_A")
    if "noB" in EXP:
        a("s_endpgm")
    gen_B_role(a)
    a.label("L_main_A")
    if "noA" in EXP:
        a("s_endpgm")
    make_srd(a, SRD_DBG, P_DBG, None, 256)
    stamp(a, 0)
    stage_prepA(a)
    stamp(a, 1)
    sync_arrive(a, 0)
    attnA_preload(a)
    sync_wait(a, 0, NA_WG)
    stamp(a, 2)
    stage_attnA(a)
    stamp(a, 3)
    sync_arrive(a, 128)
    lane_setup(a)
    make_masks(a)
    finishA_prefetch(a)
    sync_wait(a, 128, NA_WG)
    stamp(a, 4)
    stage_finishA(a)
    stamp(a, 5)
    a.label("L_main_end")
    a("s_endpgm")


def gen_final(a):
    a.raw(".p2align 8")
    a.label("final_kernel")
    a("s_cmp_ge_u32 s2, 32\ns_cbranch_scc1 L_final_end")
    load_kernargs(a)
    lane_setup(a)
    a("s_waitcnt lgkmcnt(0)")
    a(f"""
    s_and_b32 s{S_Q}, s2, 7
    s_lshr_b32 s{S_B}, s2, 3
    s_and_b32 s{S_B}, s{S_B}, 1
    """)
    make_srd(a, SRD4, P_OUT, None, 4096)
    ACC = 12
    a("s_cmp_ge_u32 s2, 16\ns_cbranch_scc1 L_final_B")
    make_srd_imm(a, SRD0, P_WS, WS_YA, 32 * 4096)
    a(f"""
    s_lshl_b32 s{S_T0}, s{S_B}, 11
    s_lshl_b32 s{S_T1}, s{S_Q}, 8
    s_add_u32 s{S_T0}, s{S_T0}, s{S_T1}
    s_lshl_b32 s{S_T1}, s{S_WAVE}, 14
    s_add_u32 s{S_T0}, s{S_T0}, s{S_T1}
    v_lshlrev_b32 v{V_T0}, 2, v{V_LANE}
    v_add_u32 v{V_T0}, s{S_T0}, v{V_T0}
    s_mov_b32 s{S_T1}, 4096
    s_mov_b32 s{S_T2}, 8192
    s_mov_b32 s{S_T3}, 12288
    buffer_load_dword v16, v{V_T0}, {sr(SRD0, 4)}, 0 offen
    buffer_load_dword v17, v{V_T0}, {sr(SRD0, 4)}, s{S_T1} offen
    buffer_load_dword v18, v{V_T0}, {sr(SRD0, 4)}, s{S_T2} offen
    buffer_load_dword v19, v{V_T0}, {sr(SRD0, 4)}, s{S_T3} offen
    s_waitcnt vmcnt(0)
    v_add_f32 v16, v16, v17
    v_add_f32 v18, v18, v19
    v_add_f32 v{ACC}, v16, v18
    s_mov_b32 s{S_T5}, 0
    s_branch L_final_red
    """)
    a.label("L_final_B")
    make_srd_imm(a, SRD0, P_WS, WS_YB, 2 * 32 * 4 * 2048)
    make_srd_imm(a, SRD1, P_WS, WS_BSTAT, 2 * 32 * 32)
    a(f"""
    s_lshl_b32 s{S_T0}, s{S_B}, 5
    s_lshl_b32 s{S_T1}, s{S_WAVE}, 2
    s_add_u32 s{S_T0}, s{S_T0}, s{S_T1}
    s_lshl_b32 s{S_T1}, s{S_T0}, 13
    s_lshl_b32 s{S_T2}, s{S_Q}, 8
    s_add_u32 s{S_T1}, s{S_T1}, s{S_T2}
    v_lshlrev_b32 v{V_T0}, 2, v{V_LANE}
    v_add_u32 v{V_T0}, s{S_T1}, v{V_T0}
    s_lshl_b32 s{S_T1}, s{S_T0}, 5
    v_mov_b32 v{V_T1}, s{S_T1}
    """)
    ST = 32
    Y = 64
    for k in range(4):
        a(f"buffer_load_dwordx4 {vr(ST + 8 * k, 4)}, v{V_T1}, {sr(SRD1, 4)}, 0 offen offset:{32 * k}")
        a(f"buffer_load_dwordx4 {vr(ST + 8 * k + 4, 4)}, v{V_T1}, {sr(SRD1, 4)}, 0 offen offset:{32 * k + 16}")
    a(f"s_mov_b32 s{S_T1}, 0")
    for k in range(4):
        for s in range(3):
            a(f"buffer_load_dword v{Y + 4 * k + s}, v{V_T0}, {sr(SRD0, 4)}, s{S_T1} offen")
            if not (k == 3 and s == 2):
                a(f"s_add_u32 s{S_T1}, s{S_T1}, {2048 if s != 2 else 4096}")
    a(f"s_waitcnt vmcnt(0)\nv_mov_b32 v{ACC}, 0")
    for k in range(4):
        b = ST + 8 * k
        a(f"""
        v_max3_f32 v16, v{b}, v{b + 2}, v{b + 4}
        """)
        for s in range(3):
            a(f"""
            v_sub_f32 v{b + 2 * s}, v{b + 2 * s}, v16
            v_mul_f32 v{b + 2 * s}, s{S_C}, v{b + 2 * s}
            v_exp_f32 v{b + 2 * s}, v{b + 2 * s}
            """)
        a(f"s_nop 0\nv_mul_f32 v17, v{b}, v{b + 1}\nv_mul_f32 v18, v{b}, v{Y + 4 * k}")
        for s in range(1, 3):
            a(f"v_fmac_f32 v17, v{b + 2 * s}, v{b + 2 * s + 1}\nv_fmac_f32 v18, v{b + 2 * s}, v{Y + 4 * k + s}")
        a(f"v_rcp_f32 v17, v17\ns_nop 0\nv_fmac_f32 v{ACC}, v18, v17")
    a(f"s_mov_b32 s{S_T5}, 1024")
    a.label("L_final_red")
    a(f"""
    v_lshlrev_b32 v{V_T0}, 2, v{V_TID}
    ds_write_b32 v{V_T0}, v{ACC}
    s_waitcnt lgkmcnt(0)
    s_barrier
    s_cmp_lg_u32 s{S_WAVE}, 0
    s_cbranch_scc1 L_final_end
    """)
    for w in range(8):
        a(f"ds_read_b32 v{16 + w}, v{V_T0} offset:{256 * w}")
    a("s_waitcnt lgkmcnt(0)")
    for w in range(1, 8):
        a(f"v_add_f32 v16, v16, v{16 + w}")
    a(f"""
    v_cvt_pk_bf16_f32 v16, v16, v16
    s_lshl_b32 s{S_T0}, s{S_B}, 11
    s_lshl_b32 s{S_T1}, s{S_Q}, 7
    s_add_u32 s{S_T0}, s{S_T0}, s{S_T1}
    s_add_u32 s{S_T0}, s{S_T0}, s{S_T5}
    v_lshlrev_b32 v{V_T0}, 1, v{V_LANE}
    buffer_store_short v16, v{V_T0}, {sr(SRD4, 4)}, s{S_T0} offen
    """)
    a.label("L_final_end")
    a("s_endpgm")


def descriptor(name, vgpr):
    return f"""
.amdhsa_kernel {name}
  .amdhsa_next_free_vgpr {vgpr}
  .amdhsa_next_free_sgpr 100
  .amdhsa_accum_offset {(vgpr + 3) // 4 * 4}
  .amdhsa_group_segment_fixed_size 0
  .amdhsa_kernarg_size 112
  .amdhsa_user_sgpr_count 2
  .amdhsa_user_sgpr_kernarg_segment_ptr 1
  .amdhsa_system_sgpr_workgroup_id_x 1
.end_amdhsa_kernel
"""


def main():
    a = Asm()
    gen_main(a)
    gen_final(a)
    launches = [
        ("main_kernel", NA_WG + NB_WG, LA_END),
        ("final_kernel", 32, 2048),
    ]
    txt = HEADER
    for k, g, lds in launches:
        txt += f"; @launch kernel={k} grid=({g},1,1) block=(512,1,1) lds={lds}\n"
    txt += '.amdgcn_target "amdgcn-amd-amdhsa--gfx950"\n.text\n'
    for k, _, _ in launches:
        txt += f".globl {k}\n.type {k},@function\n"
    txt += a.text()
    txt += '.section .rodata,"a"\n.p2align 6\n'
    for k, _, _ in launches:
        txt += ".p2align 6\n" + descriptor(k, NVGPR if k == 'main_kernel' else 128)
    open(OUT, "w").write(txt)
    print("wrote", OUT, len(txt))


if __name__ == "__main__":
    main()
```

```python
import os
import struct
import sys

EXP = os.environ.get("EXP", "")
WPOL = os.environ.get("WPOL", "")

NAME = "concat_heads__compressed_kv_cla__mha_block_cached__decode"
OUT = os.environ.get("OUTS", f"cdna_kernels/{NAME}.s")

HEADER = """; Kernarg layout for this problem (112 bytes, ptrs only, base s[0:1]):
"""


def f32bits(x):
    return struct.unpack("<I", struct.pack("<f", x))[0]


import math
CSCALE = (128 ** -0.5) * math.log2(math.e)

NSA = 32
WS_QP = 0
WS_APART = 0x10000
WS_ASTAT = WS_APART + 2 * NSA * 32 * 512 * 4
WS_YA = WS_ASTAT + 0x10000
WS_YB = WS_YA + 32 * 2 * 512 * 4
WS_BSTAT = WS_YB + 2 * 32 * 4 * 512 * 4
WS_END = WS_BSTAT + 0x10000

NA_WG = 2 * NSA
NB_WG = 192
NVGPR = 256


class Asm:
    def __init__(self):
        self.lines = []
        self.uid = 0

    def __call__(self, s):
        for ln in s.strip("\n").split("\n"):
            ln = ln.strip()
            if ln:
                self.lines.append("    " + ln)

    def label(self, l):
        self.lines.append(l + ":")

    def new(self, base):
        self.uid += 1
        return f"L_{base}_{self.uid}"

    def raw(self, s):
        self.lines.append(s)

    def text(self):
        return "\n".join(self.lines) + "\n"


def vr(a, n):
    return f"v[{a}:{a + n - 1}]"


def sr(a, n):
    return f"s[{a}:{a + n - 1}]"


P_AX, P_CKV, P_AWQ, P_WUK, P_WUV, P_AWO, P_BX, P_BK = 16, 18, 20, 22, 24, 26, 28, 30
P_BV, P_BWQ, P_BWO, P_OUT = 32, 34, 36, 38
P_DBG, P_WS = 40, 42
SRD0, SRD1, SRD2, SRD3, SRD4 = 44, 48, 52, 56, 60
S_WAVE = 64
S_C = 65
S_T0, S_T1, S_T2, S_T3, S_T4, S_T5 = 66, 67, 68, 69, 70, 71
S_H, S_B, S_Q = 72, 73, 74
S_LOOP = 75
S_OFF = 76
S_SAVE = 78
S_R0, S_R1, S_R2, S_R3 = 80, 81, 82, 83

V_TID = 0
V_LANE = 1
V_L15 = 2
V_G = 3
V_MASK = 4
V_T0, V_T1, V_T2, V_T3 = 8, 9, 10, 11


def load_kernargs(a):
    a(f"""
    s_load_dwordx16 {sr(16, 16)}, s[0:1], 0
    s_load_dwordx8 {sr(32, 8)}, s[0:1], 64
    s_load_dwordx4 {sr(40, 4)}, s[0:1], 96
    """)


def lane_setup(a):
    a(f"""
    v_and_b32 v{V_LANE}, 63, v{V_TID}
    v_lshrrev_b32 v{V_T0}, 6, v{V_TID}
    v_and_b32 v{V_L15}, 15, v{V_LANE}
    v_readfirstlane_b32 s{S_WAVE}, v{V_T0}
    v_lshrrev_b32 v{V_G}, 4, v{V_LANE}
    s_mov_b32 s{S_C}, {f32bits(CSCALE):#x}
    """)


def make_masks(a):
    a(f"""
    v_and_b32 v{V_T0}, 7, v{V_LANE}
    v_lshrrev_b32 v{V_T1}, 1, v{V_T0}
    v_and_b32 v{V_T0}, 1, v{V_T0}
    v_lshlrev_b32 v{V_T0}, 4, v{V_T0}
    v_mov_b32 v{V_T2}, 0xffff
    v_lshlrev_b32 v{V_T2}, v{V_T0}, v{V_T2}
    """)
    for j in range(4):
        a(f"""
        v_cmp_eq_u32 vcc, {j}, v{V_T1}
        s_nop 1
        v_cndmask_b32 v{V_MASK + j}, 0, v{V_T2}, vcc
        """)


def make_srd(a, srd, ptr, off_sgpr, nbytes):
    if off_sgpr is None:
        a(f"s_mov_b32 s{srd}, s{ptr}\ns_mov_b32 s{srd + 1}, s{ptr + 1}")
    else:
        a(f"s_add_u32 s{srd}, s{ptr}, s{off_sgpr}\ns_addc_u32 s{srd + 1}, s{ptr + 1}, 0")
    a(f"s_mov_b32 s{srd + 2}, {nbytes:#x}\ns_mov_b32 s{srd + 3}, 0x00020000")


def make_srd_imm(a, srd, ptr, off, nbytes):
    a(f"s_add_u32 s{srd}, s{ptr}, {off:#x}\ns_addc_u32 s{srd + 1}, s{ptr + 1}, 0")
    a(f"s_mov_b32 s{srd + 2}, {nbytes:#x}\ns_mov_b32 s{srd + 3}, 0x00020000")


def delta_mfma(a, xregs, i, data, acc, tmp, first=False):
    sel = S_R0 if (i & 1) == 0 else S_R1
    a(f"v_perm_b32 v{tmp + 4}, v{xregs + (i >> 1)}, v{xregs + (i >> 1)}, s{sel}")
    for j in range(4):
        a(f"v_and_b32 v{tmp + j}, v{tmp + 4}, v{V_MASK + j}")
    a("s_nop 1")
    c = "0" if first else vr(acc, 4)
    a(f"v_mfma_f32_16x16x32_bf16 {vr(acc, 4)}, {vr(tmp, 4)}, {vr(data, 4)}, {c}")


def perm_consts(a):
    a(f"s_mov_b32 s{S_R0}, 0x01000100\ns_mov_b32 s{S_R1}, 0x03020302")


L_PART = 0
L_BF = 8192
L_BF2 = 10240
L_STAT = 11264
L_YP = 12288
L_END_SMALL = 20480


def gemv512_xload(a, xsrc, xregs):
    a(f"""
    v_lshrrev_b32 v{V_T0}, 3, v{V_L15}
    v_lshlrev_b32 v{V_T0}, 10, v{V_T0}
    v_lshlrev_b32 v{V_T1}, 5, v{V_G}
    v_add_u32 v{V_T0}, v{V_T0}, v{V_T1}
    s_lshl_b32 s{S_T0}, s{S_WAVE}, 7
    v_add_u32 v{V_T0}, s{S_T0}, v{V_T0}
    """)
    if xsrc[0] == 'global':
        a(f"""
        buffer_load_dwordx4 {vr(xregs, 4)}, v{V_T0}, {sr(xsrc[1], 4)}, 0 offen
        buffer_load_dwordx4 {vr(xregs + 4, 4)}, v{V_T0}, {sr(xsrc[1], 4)}, 0 offen offset:16
        """)
    else:
        a(f"""
        ds_read_b128 {vr(xregs, 4)}, v{V_T0} offset:{xsrc[1]}
        ds_read_b128 {vr(xregs + 4, 4)}, v{V_T0} offset:{xsrc[1] + 16}
        s_waitcnt lgkmcnt(0)
        """)


def gemv512_wloads(a, srd_w, wbuf):
    a(f"""
    v_lshlrev_b32 v{V_T1}, 17, v{V_G}
    v_lshlrev_b32 v{V_T2}, 4, v{V_L15}
    v_add_u32 v{V_T1}, v{V_T1}, v{V_T2}
    s_lshl_b32 s{S_T0}, s{S_WAVE}, 19
    """)
    for i in range(16):
        a(f"buffer_load_dwordx4 {vr(wbuf[i], 4)}, v{V_T1}, {sr(srd_w, 4)}, s{S_T0} offen{WPOL}")
        if i != 15:
            a(f"s_add_u32 s{S_T0}, s{S_T0}, 8192")


def gemv512_compute(a, wbuf, xregs, acc, tmp, nyounger):
    for i in range(16):
        if nyounger is not None:
            a(f"s_waitcnt vmcnt({15 - i + nyounger})")
        delta_mfma(a, xregs, i, wbuf[i], acc, tmp, first=(i == 0))
    a(f"""
    v_lshrrev_b32 v{V_T0}, 1, v{V_G}
    v_lshlrev_b32 v{V_T0}, 9, v{V_T0}
    v_lshlrev_b32 v{V_T1}, 5, v{V_L15}
    v_add_u32 v{V_T0}, v{V_T0}, v{V_T1}
    v_and_b32 v{V_T1}, 1, v{V_G}
    v_lshlrev_b32 v{V_T1}, 4, v{V_T1}
    v_add_u32 v{V_T0}, v{V_T0}, v{V_T1}
    s_lshl_b32 s{S_T0}, s{S_WAVE}, 10
    v_add_u32 v{V_T0}, s{S_T0}, v{V_T0}
    s_nop 7
    ds_write_b128 v{V_T0}, {vr(acc, 4)} offset:{L_PART}
    s_waitcnt lgkmcnt(0)
    s_barrier
    """)
    a(f"""
    v_and_b32 v{V_T0}, 255, v{V_TID}
    v_lshlrev_b32 v{V_T1}, 2, v{V_T0}
    """)
    for w in range(8):
        a(f"ds_read_b32 v{xregs + w}, v{V_T1} offset:{L_PART + w * 1024}")
    a("s_waitcnt lgkmcnt(0)")
    for w in range(1, 8):
        a(f"v_add_f32 v{xregs}, v{xregs}, v{xregs + w}")
    a(f"""
    v_cvt_pk_bf16_f32 v{xregs}, v{xregs}, v{xregs}
    v_lshlrev_b32 v{V_T1}, 1, v{V_T0}
    ds_write_b16 v{V_T1}, v{xregs} offset:{L_BF2}
    s_waitcnt lgkmcnt(0)
    s_barrier
    """)


def gemv512_phase(a, srd_w, xsrc, wbuf, xregs, acc, tmp, issue_extra=None):
    gemv512_xload(a, xsrc, xregs)
    gemv512_wloads(a, srd_w, wbuf)
    nextra = issue_extra() if issue_extra is not None else 0
    gemv512_compute(a, wbuf, xregs, acc, tmp, nextra)


S_PW = 88


def proj_addr(a, v_off):
    a(f"""
    s_and_b32 s{S_T1}, s{S_WAVE}, 3
    s_lshr_b32 s{S_T2}, s{S_WAVE}, 2
    v_lshlrev_b32 v{v_off}, 14, v{V_G}
    v_lshlrev_b32 v{V_T2}, 4, v{V_L15}
    v_add_u32 v{v_off}, v{v_off}, v{V_T2}
    s_lshl_b32 s{S_PW}, s{S_T2}, 16
    s_lshl_b32 s{S_T3}, s{S_T1}, 8
    s_add_u32 s{S_PW}, s{S_PW}, s{S_T3}
    s_add_u32 s{S_PW + 1}, s{S_PW}, 4096
    s_add_u32 s{S_PW + 2}, s{S_PW}, 8192
    s_add_u32 s{S_PW + 3}, s{S_PW}, 12288
    """)


def proj_load(a, srd_w, v_off, wbuf, i):
    a(f"buffer_load_dwordx4 {vr(wbuf[i], 4)}, v{v_off}, {sr(srd_w, 4)}, s{S_PW + (i >> 2)} offen offset:{(i & 3) * 1024}{WPOL}")


def proj_compute(a, xlds, two_b, wbuf, xregs, acc, tmp, waits=True):
    a(f"""
    s_and_b32 s{S_T1}, s{S_WAVE}, 3
    s_lshr_b32 s{S_T2}, s{S_WAVE}, 2
    v_lshlrev_b32 v{V_T0}, 5, v{V_G}
    s_lshl_b32 s{S_T0}, s{S_T2}, 7
    v_add_u32 v{V_T0}, s{S_T0}, v{V_T0}
    """)
    if two_b:
        a(f"""
        v_lshrrev_b32 v{V_T1}, 3, v{V_L15}
        v_lshlrev_b32 v{V_T1}, 8, v{V_T1}
        v_add_u32 v{V_T0}, v{V_T0}, v{V_T1}
        """)
    a(f"""
    ds_read_b128 {vr(xregs, 4)}, v{V_T0} offset:{xlds}
    ds_read_b128 {vr(xregs + 4, 4)}, v{V_T0} offset:{xlds + 16}
    s_waitcnt lgkmcnt(0)
    """)
    for i in range(16):
        if waits:
            a(f"s_waitcnt vmcnt({15 - i})")
        delta_mfma(a, xregs, i, wbuf[i], acc, tmp, first=(i == 0))
    a(f"""
    v_lshrrev_b32 v{V_T0}, 1, v{V_G}
    v_lshlrev_b32 v{V_T0}, 11, v{V_T0}
    v_lshlrev_b32 v{V_T1}, 5, v{V_L15}
    v_add_u32 v{V_T0}, v{V_T0}, v{V_T1}
    v_and_b32 v{V_T1}, 1, v{V_G}
    v_lshlrev_b32 v{V_T1}, 4, v{V_T1}
    v_add_u32 v{V_T0}, v{V_T0}, v{V_T1}
    s_lshl_b32 s{S_T0}, s{S_T2}, 12
    s_lshl_b32 s{S_T3}, s{S_T1}, 9
    s_add_u32 s{S_T0}, s{S_T0}, s{S_T3}
    v_add_u32 v{V_T0}, s{S_T0}, v{V_T0}
    s_nop 7
    ds_write_b128 v{V_T0}, {vr(acc, 4)} offset:{L_YP}
    s_waitcnt lgkmcnt(0)
    s_barrier
    """)


def stamp(a, slot, wg=None):
    if "stamp" not in EXP:
        return
    skip = a.new("stamp")
    a(f"""
    s_cmp_lg_u32 s{S_WAVE}, 0
    s_cbranch_scc1 {skip}
    s_memrealtime s[92:93]
    s_lshl_b32 s94, s2, 5
    s_add_u32 s94, s94, {WS_END}
    s_add_u32 s96, s{P_WS}, s94
    s_addc_u32 s97, s{P_WS + 1}, 0
    s_mov_b32 s98, 32
    s_mov_b32 s99, 0x00020000
    s_waitcnt lgkmcnt(0)
    v_mov_b32 v10, s92
    v_mov_b32 v11, 0
    buffer_store_dword v10, v11, s[96:99], 0 offen offset:{slot * 4}
    """)
    a.label(skip)


def dstamp(a, slot, invert=False):
    if "dstamp" not in EXP:
        return
    skip = a.new("dstamp")
    a(f"""
    s_cmp_lg_u32 s{S_WAVE}, 0
    s_cbranch_scc1 {skip}
    s_memrealtime s[92:93]
    s_mov_b32 s96, s{P_DBG}
    s_mov_b32 s97, s{P_DBG + 1}
    s_mov_b32 s98, 256
    s_mov_b32 s99, 0x00020000
    s_waitcnt lgkmcnt(0)
    {"s_not_b32 s92, s92" if invert else ""}
    v_mov_b32 v10, s92
    v_mov_b32 v11, 0
    s_mov_b64 exec, 1
    buffer_atomic_umax v10, v11, s[96:99], 0 offen offset:{slot * 4}
    s_mov_b64 exec, -1
    """)
    a.label(skip)


SRD_DBG = 84
V_SY0, V_SY1 = 8, 9


def sync_arrive(a, cnt_off):
    skip = a.new("arr_skip")
    a(f"""
    s_waitcnt vmcnt(0) lgkmcnt(0)
    s_barrier
    s_cmp_lg_u32 s{S_WAVE}, 0
    s_cbranch_scc1 {skip}
    v_mov_b32 v{V_SY0}, 1
    v_mov_b32 v{V_SY1}, 0
    s_mov_b64 exec, 1
    buffer_atomic_add v{V_SY0}, v{V_SY1}, {sr(SRD_DBG, 4)}, 0 offen offset:{cnt_off}
    s_mov_b64 exec, -1
    """)
    a.label(skip)


def sync_wait(a, cnt_off, target):
    skip = a.new("sync_skip")
    poll = a.new("sync_poll")
    done = a.new("sync_done")
    a(f"""
    s_cmp_lg_u32 s{S_WAVE}, 0
    s_cbranch_scc1 {skip}
    v_mov_b32 v{V_SY1}, 0
    s_mov_b32 s{S_T5}, 0
    """)
    a.label(poll)
    a(f"""
    buffer_load_dword v{V_SY0}, v{V_SY1}, {sr(SRD_DBG, 4)}, 0 offen offset:{cnt_off} sc1
    s_add_u32 s{S_T5}, s{S_T5}, 1
    s_waitcnt vmcnt(0)
    v_readfirstlane_b32 s{S_T4}, v{V_SY0}
    s_cmp_ge_u32 s{S_T5}, 0x40000
    s_cbranch_scc1 {done}
    s_cmp_ge_u32 s{S_T4}, {target}
    s_cbranch_scc1 {done}
    s_sleep 1
    s_branch {poll}
    """)
    a.label(done)
    a.label(skip)
    a("s_barrier")


A_C = 32


def attnA_preload(a):
    a(f"""
    s_lshr_b32 s{S_B}, s2, 5
    s_and_b32 s{S_Q}, s2, 31
    s_lshl_b32 s{S_T0}, s{S_B}, 23
    s_lshl_b32 s{S_T1}, s{S_Q}, 18
    s_add_u32 s{S_OFF}, s{S_T0}, s{S_T1}
    """)
    make_srd(a, SRD4, P_CKV, S_OFF, 256 * 1024)
    a(f"""
    v_and_b32 v{V_T0}, 7, v{V_LANE}
    v_lshrrev_b32 v{V_T1}, 3, v{V_LANE}
    v_lshlrev_b32 v{V_T2}, 10, v{V_T1}
    v_lshlrev_b32 v{V_T3}, 4, v{V_T0}
    v_add_u32 v{V_T2}, v{V_T2}, v{V_T3}
    s_lshl_b32 s{S_T0}, s{S_WAVE}, 7
    v_add_u32 v31, s{S_T0}, v{V_T2}
    s_mov_b32 s{S_T0}, 0
    """)
    for t in range(8):
        for kk in range(4):
            a(f"buffer_load_dwordx4 {vr(A_C + 16 * t + 4 * kk, 4)}, v31, {sr(SRD4, 4)}, s{S_T0} offen nt")
            if not (t == 7 and kk == 3):
                a(f"s_add_u32 s{S_T0}, s{S_T0}, 8192")
    return 32


def stage_prepA(a):
    a(f"""
    s_lshr_b32 s{S_H}, s2, 1
    s_lshl_b32 s{S_OFF}, s{S_H}, 8
    """)
    make_srd(a, SRD0, P_AX, None, 2048)
    make_srd(a, SRD1, P_AWQ, S_OFF, 0)
    a(f"s_sub_u32 s{SRD1 + 2}, {512 * 8192}, s{S_OFF}")
    make_srd(a, SRD2, P_WUK, S_OFF, 0)
    a(f"s_sub_u32 s{SRD2 + 2}, {512 * 8192}, s{S_OFF}")
    make_srd_imm(a, SRD3, P_WS, WS_QP, 65536)
    wbuf = [160 + 4 * i for i in range(16)]
    ubuf = [224 + 4 * i for i in range(8)]
    QF = 160
    ACC = 176

    def extra():
        a(f"""
        v_lshlrev_b32 v30, 13, v{V_L15}
        v_lshlrev_b32 v{V_T2}, 4, v{V_G}
        v_add_u32 v30, v30, v{V_T2}
        s_and_b32 s{S_T1}, s2, 1
        s_lshl_b32 s{S_T1}, s{S_T1}, 21
        s_lshl_b32 s{S_T2}, s{S_WAVE}, 18
        s_add_u32 s{S_T1}, s{S_T1}, s{S_T2}
        s_add_u32 s{S_T2}, s{S_T1}, {16 * 8192}
        """)
        for t in range(2):
            for j in range(4):
                a(f"buffer_load_dwordx4 {vr(ubuf[t * 4 + j], 4)}, v30, {sr(SRD2, 4)}, s{S_T1 + t} offen offset:{64 * j}{WPOL}")
        return 8

    gemv512_phase(a, SRD1, ('global', SRD0), wbuf, 12, 20, 24, issue_extra=extra)
    a(f"""
    v_and_b32 v{V_T0}, 1, v{V_L15}
    v_lshlrev_b32 v{V_T0}, 8, v{V_T0}
    v_lshlrev_b32 v{V_T1}, 4, v{V_G}
    v_add_u32 v{V_T0}, v{V_T0}, v{V_T1}
    """)
    for j in range(4):
        a(f"ds_read_b128 {vr(QF + 4 * j, 4)}, v{V_T0} offset:{L_BF2 + 64 * j}")
    a(f"""
    v_lshlrev_b32 v{V_T0}, 15, v{V_L15}
    v_lshlrev_b32 v{V_T2}, 3, v{V_G}
    v_add_u32 v{V_T0}, v{V_T0}, v{V_T2}
    s_lshl_b32 s{S_T0}, s2, 9
    s_lshl_b32 s{S_T1}, s{S_WAVE}, 6
    s_add_u32 s{S_T0}, s{S_T0}, s{S_T1}
    v_add_u32 v{V_T0}, s{S_T0}, v{V_T0}
    s_waitcnt lgkmcnt(0) vmcnt(0)
    """)
    for t in range(2):
        acc = ACC + 4 * t
        for j in range(4):
            c = "0" if j == 0 else vr(acc, 4)
            a(f"v_mfma_f32_16x16x32_bf16 {vr(acc, 4)}, {vr(ubuf[t * 4 + j], 4)}, {vr(QF + 4 * j, 4)}, {c}")
    a("s_nop 7\ns_nop 3")
    a(f"v_cmp_gt_u32 vcc, 2, v{V_L15}\ns_and_saveexec_b64 {sr(S_SAVE, 2)}, vcc")
    for t in range(2):
        acc = ACC + 4 * t
        a(f"""
        v_cvt_pk_bf16_f32 v{16 + 2 * t}, v{acc}, v{acc + 1}
        v_cvt_pk_bf16_f32 v{17 + 2 * t}, v{acc + 2}, v{acc + 3}
        buffer_store_dwordx2 {vr(16 + 2 * t, 2)}, v{V_T0}, {sr(SRD3, 4)}, 0 offen offset:{32 * t} sc1
        """)
    a(f"s_mov_b64 exec, {sr(S_SAVE, 2)}")


def gen_B_role(a):
    DEPTH = 3
    KBUF = [64 + 32 * i for i in range(DEPTH)]
    VBUF = [80 + 32 * i for i in range(DEPTH)]
    WO = [160 + 4 * i for i in range(16)]
    QF = 32
    AT = 48
    V_S = 12
    V_O = 16
    V_PK = 20
    V_L, V_TM, V_M, V_NMC = 24, 25, 26, 27
    V_WOFF, V_OFFK, V_OFFV = 29, 30, 31
    S_CNT = 77
    NT = os.environ.get("KVPOL", " nt")
    WAITN = 8 * DEPTH - 4
    stamp(a, 0)
    dstamp(a, 8, True)
    a(f"""
    s_sub_u32 s{S_T0}, s2, {NA_WG}
    s_and_b32 s{S_T1}, s{S_T0}, 7
    s_lshr_b32 s{S_T2}, s{S_T0}, 3
    s_and_b32 s{S_T3}, s{S_T2}, 3
    s_lshl_b32 s{S_T3}, s{S_T3}, 3
    s_add_u32 s{S_H}, s{S_T1}, s{S_T3}
    s_lshr_b32 s{S_T2}, s{S_T2}, 2
    s_cmp_ge_u32 s{S_T2}, 3
    s_cselect_b32 s{S_B}, 1, 0
    s_mul_i32 s{S_T3}, s{S_B}, 3
    s_sub_u32 s{S_Q}, s{S_T2}, s{S_T3}
    """)
    a(f"""
    s_lshl_b32 s{S_T0}, s{S_B}, 5
    s_add_u32 s{S_T0}, s{S_T0}, s{S_H}
    s_lshl_b32 s{S_T0}, s{S_T0}, 21
    s_mul_i32 s{S_T1}, s{S_Q}, {171 * 4096}
    s_add_u32 s{S_T0}, s{S_T0}, s{S_T1}
    s_lshl_b32 s{S_T1}, s{S_WAVE}, 12
    s_add_u32 s{S_OFF}, s{S_T0}, s{S_T1}
    s_cmp_eq_u32 s{S_Q}, 2
    s_cselect_b32 s{S_T2}, 1, 0
    s_sub_u32 s{S_T2}, 171, s{S_T2}
    s_sub_u32 s{S_T2}, s{S_T2}, s{S_WAVE}
    s_add_u32 s{S_CNT}, s{S_T2}, 7
    s_lshr_b32 s{S_CNT}, s{S_CNT}, 3
    """)
    make_srd(a, SRD0, P_BK, S_OFF, 0)
    make_srd(a, SRD1, P_BV, S_OFF, 0)
    a(f"s_lshl_b32 s{SRD0 + 2}, s{S_T2}, 12\ns_lshl_b32 s{SRD1 + 2}, s{S_T2}, 12")
    make_srd(a, SRD2, P_BX, None, 2048)
    a(f"s_lshl_b32 s{S_OFF}, s{S_H}, 8")
    make_srd(a, SRD3, P_BWQ, S_OFF, 0)
    a(f"s_sub_u32 s{SRD3 + 2}, {512 * 8192}, s{S_OFF}")
    a(f"s_lshl_b32 s{S_OFF}, s{S_H}, 17")
    make_srd(a, SRD4, P_BWO, S_OFF, 131072)
    a(f"""
    v_lshlrev_b32 v{V_OFFK}, 8, v{V_L15}
    v_lshlrev_b32 v{V_T0}, 4, v{V_G}
    v_add_u32 v{V_OFFK}, v{V_OFFK}, v{V_T0}
    v_lshlrev_b32 v{V_OFFV}, 10, v{V_G}
    v_lshlrev_b32 v{V_T0}, 4, v{V_L15}
    v_add_u32 v{V_OFFV}, v{V_OFFV}, v{V_T0}
    """)
    proj_addr(a, V_WOFF)

    def loadK(buf, soff):
        for j in range(4):
            a(f"buffer_load_dwordx4 {vr(buf + 4 * j, 4)}, v{V_OFFV}, {sr(SRD0, 4)}, {soff} offen offset:{256 * j}{NT}")

    def loadV(buf, soff):
        for i in range(4):
            a(f"buffer_load_dwordx4 {vr(buf + 4 * i, 4)}, v{V_OFFV}, {sr(SRD1, 4)}, {soff} offen offset:{256 * i}{NT}")

    def extra():
        a(f"s_mov_b32 s{S_LOOP}, 0")
        for d in range(DEPTH):
            loadK(KBUF[d], f"s{S_LOOP}")
            loadV(VBUF[d], f"s{S_LOOP}")
            a(f"s_add_u32 s{S_LOOP}, s{S_LOOP}, 32768")
        return 8 * DEPTH

    gemv512_phase(a, SRD3, ('global', SRD2), WO, 12, 20, 24, issue_extra=extra)
    for i in range(16):
        proj_load(a, SRD4, V_WOFF, WO, i)
    a(f"""
    v_lshlrev_b32 v{V_T0}, 4, v{V_L15}
    s_lshl_b32 s{S_T0}, s{S_B}, 8
    v_add_u32 v{V_T0}, s{S_T0}, v{V_T0}
    ds_read_b128 {vr(QF, 4)}, v{V_T0} offset:{L_BF2}
    """)
    a(f"""
    v_mov_b32 v{V_L}, 0
    v_mov_b32 v{V_M}, 0xff800000
    v_mov_b32 v{V_NMC}, 0
    v_mov_b32 v{V_O}, 0
    v_mov_b32 v{V_O + 1}, 0
    v_mov_b32 v{V_O + 2}, 0
    v_mov_b32 v{V_O + 3}, 0
    s_waitcnt lgkmcnt(0)
    """)
    rare_blocks = []
    stamp(a, 1)
    dstamp(a, 11)

    def tile(K, V):
        rare = a.new("brare")
        back = a.new("bback")
        a(f"s_waitcnt vmcnt({WAITN})")
        for j in range(4):
            for i in range(4):
                c = "0" if j == 0 else f"v{V_S + i}"
                a(f"v_dot2_f32_bf16 v{V_S + i}, v{K + 4 * i + j}, v{QF + j}, {c}")
        loadK(K, f"s{S_LOOP}")
        for r in (8, 4, 2, 1):
            for i in range(4):
                a(f"v_add_f32_dpp v{V_S + i}, v{V_S + i}, v{V_S + i} row_ror:{r} row_mask:0xf bank_mask:0xf")
        a(f"""
        v_max3_f32 v{V_TM}, v{V_S}, v{V_S + 1}, v{V_S + 2}
        v_max_f32 v{V_TM}, v{V_TM}, v{V_S + 3}
        v_cmp_gt_f32 vcc, v{V_TM}, v{V_M}
        s_cbranch_vccnz {rare}
        """)
        a.label(back)
        for i in range(4):
            a(f"v_fma_f32 v{V_S + i}, v{V_S + i}, s{S_C}, v{V_NMC}")
        for i in range(4):
            a(f"v_exp_f32 v{V_S + i}, v{V_S + i}")
        a("s_nop 0")
        for i in range(4):
            a(f"v_cvt_pk_bf16_f32 v{V_PK + i}, v{V_S + i}, v{V_S + i}")
        a(f"""
        v_add_f32 v{V_S}, v{V_S}, v{V_S + 1}
        v_add_f32 v{V_S + 2}, v{V_S + 2}, v{V_S + 3}
        v_add_f32 v{V_L}, v{V_L}, v{V_S}
        v_add_f32 v{V_L}, v{V_L}, v{V_S + 2}
        """)
        for i in range(4):
            for j in range(4):
                a(f"v_and_b32 v{AT + 4 * i + j}, v{V_PK + i}, v{V_MASK + j}")
        a(f"s_waitcnt vmcnt({WAITN})")
        for i in range(4):
            a(f"v_mfma_f32_16x16x32_bf16 {vr(V_O, 4)}, {vr(AT + 4 * i, 4)}, {vr(V + 4 * i, 4)}, {vr(V_O, 4)}")
        loadV(V, f"s{S_LOOP}")
        a(f"s_add_u32 s{S_LOOP}, s{S_LOOP}, 32768")
        a(f"s_sub_u32 s{S_CNT}, s{S_CNT}, 1\ns_cmp_eq_u32 s{S_CNT}, 0")
        rare_blocks.append((rare, back))

    loop = a.new("bloop")
    done = a.new("bdone")
    a.label(loop)
    for d in range(DEPTH):
        tile(KBUF[d], VBUF[d])
        if d != DEPTH - 1:
            a(f"s_cbranch_scc1 {done}")
        else:
            a(f"s_cbranch_scc0 {loop}")
    a(f"s_branch {done}")
    for rare, back in rare_blocks:
        a.label(rare)
        a(f"""
        v_readlane_b32 s{S_R2}, v{V_TM}, 0
        v_readlane_b32 s{S_R3}, v{V_TM}, 16
        v_readlane_b32 s{S_T4}, v{V_TM}, 32
        v_readlane_b32 s{S_T5}, v{V_TM}, 48
        s_nop 1
        v_max_f32 v{V_TM}, s{S_R2}, v{V_M}
        v_max_f32 v{V_TM}, s{S_R3}, v{V_TM}
        v_max_f32 v{V_TM}, s{S_T4}, v{V_TM}
        v_max_f32 v{V_TM}, s{S_T5}, v{V_TM}
        v_sub_f32 v{V_T0}, v{V_M}, v{V_TM}
        v_mul_f32 v{V_T0}, s{S_C}, v{V_T0}
        v_exp_f32 v{V_T0}, v{V_T0}
        v_mov_b32 v{V_M}, v{V_TM}
        v_mul_f32 v{V_NMC}, s{S_C}, v{V_TM}
        v_sub_f32 v{V_NMC}, 0, v{V_NMC}
        v_mul_f32 v{V_L}, v{V_L}, v{V_T0}
        v_mul_f32 v{V_O}, v{V_O}, v{V_T0}
        v_mul_f32 v{V_O + 1}, v{V_O + 1}, v{V_T0}
        v_mul_f32 v{V_O + 2}, v{V_O + 2}, v{V_T0}
        v_mul_f32 v{V_O + 3}, v{V_O + 3}, v{V_T0}
        s_branch {back}
        """)
    a.label(done)
    a(f"""
    s_nop 7
    v_readlane_b32 s{S_R2}, v{V_L}, 0
    v_readlane_b32 s{S_R3}, v{V_L}, 16
    v_readlane_b32 s{S_T4}, v{V_L}, 32
    v_readlane_b32 s{S_T5}, v{V_L}, 48
    s_nop 1
    v_mov_b32 v{V_L}, s{S_R2}
    v_add_f32 v{V_L}, s{S_R3}, v{V_L}
    v_add_f32 v{V_L}, s{S_T4}, v{V_L}
    v_add_f32 v{V_NMC}, s{S_T5}, v{V_L}
    v_lshlrev_b32 v{V_T0}, 5, v{V_L15}
    v_lshlrev_b32 v{V_T1}, 4, v{V_G}
    v_add_u32 v{V_T0}, v{V_T0}, v{V_T1}
    s_lshl_b32 s{S_T0}, s{S_WAVE}, 9
    v_add_u32 v{V_T0}, s{S_T0}, v{V_T0}
    s_lshl_b32 s{S_T0}, s{S_WAVE}, 3
    v_mov_b32 v{V_T1}, s{S_T0}
    v_cmp_gt_u32 vcc, 32, v{V_LANE}
    s_and_saveexec_b64 {sr(S_SAVE, 2)}, vcc
    ds_write_b128 v{V_T0}, {vr(V_O, 4)} offset:{L_PART}
    ds_write_b64 v{V_T1}, {vr(V_M, 2)} offset:{L_STAT}
    s_mov_b64 exec, {sr(S_SAVE, 2)}
    s_waitcnt lgkmcnt(0)
    s_barrier
    """)
    ST = 32
    a(f"v_mov_b32 v{V_T0}, 0")
    for k in range(4):
        a(f"ds_read_b128 {vr(ST + 4 * k, 4)}, v{V_T0} offset:{L_STAT + 16 * k}")
    a(f"""
    v_and_b32 v{V_T1}, 127, v{V_TID}
    v_lshlrev_b32 v{V_T2}, 2, v{V_T1}
    """)
    for w in range(8):
        a(f"ds_read_b32 v{48 + w}, v{V_T2} offset:{L_PART + 512 * w}")
    a("s_waitcnt lgkmcnt(0)")
    MG = 56
    a(f"""
    v_max3_f32 v{MG}, v{ST}, v{ST + 2}, v{ST + 4}
    v_max3_f32 v{MG}, v{MG}, v{ST + 6}, v{ST + 8}
    v_max3_f32 v{MG}, v{MG}, v{ST + 10}, v{ST + 12}
    v_max_f32 v{MG}, v{MG}, v{ST + 14}
    """)
    for w in range(8):
        a(f"""
        v_sub_f32 v{ST + 2 * w}, v{ST + 2 * w}, v{MG}
        v_mul_f32 v{ST + 2 * w}, s{S_C}, v{ST + 2 * w}
        v_exp_f32 v{ST + 2 * w}, v{ST + 2 * w}
        """)
    LG = 57
    a(f"s_nop 0\nv_mul_f32 v{LG}, v{ST}, v{ST + 1}\nv_mul_f32 v58, v{ST}, v48")
    for w in range(1, 8):
        a(f"v_fmac_f32 v{LG}, v{ST + 2 * w}, v{ST + 2 * w + 1}")
        a(f"v_fmac_f32 v58, v{ST + 2 * w}, v{48 + w}")
    a(f"""
    v_cvt_pk_bf16_f32 v58, v58, v58
    v_lshlrev_b32 v{V_T1}, 1, v{V_T1}
    ds_write_b16 v{V_T1}, v58 offset:{L_BF}
    s_waitcnt lgkmcnt(0) vmcnt(0)
    s_barrier
    """)
    stamp(a, 2)
    proj_compute(a, L_BF, False, WO, 12, 20, 24, waits=False)
    stamp(a, 3)
    dstamp(a, 9)
    dstamp(a, 12, True)
    a(f"""
    s_lshl_b32 s{S_T0}, s{S_B}, 5
    s_add_u32 s{S_T0}, s{S_T0}, s{S_H}
    s_lshl_b32 s{S_T0}, s{S_T0}, 2
    s_add_u32 s{S_T0}, s{S_T0}, s{S_Q}
    s_lshl_b32 s{S_OFF}, s{S_T0}, 11
    s_add_u32 s{S_OFF}, s{S_OFF}, {WS_YB}
    """)
    make_srd(a, SRD3, P_WS, S_OFF, 2048)
    a(f"""
    s_lshl_b32 s{S_OFF}, s{S_T0}, 3
    s_add_u32 s{S_OFF}, s{S_OFF}, {WS_BSTAT}
    """)
    make_srd(a, SRD4, P_WS, S_OFF, 8)
    a(f"""
    v_lshlrev_b32 v{V_T0}, 2, v{V_TID}
    ds_read_b32 v{V_T1}, v{V_T0} offset:{L_YP}
    ds_read_b32 v{V_T2}, v{V_T0} offset:{L_YP + 4096}
    s_waitcnt lgkmcnt(0)
    v_add_f32 v{V_T1}, v{V_T1}, v{V_T2}
    buffer_store_dword v{V_T1}, v{V_T0}, {sr(SRD3, 4)}, 0 offen
    v_lshlrev_b32 v{V_T0}, 3, v{V_TID}
    buffer_store_dwordx2 {vr(MG, 2)}, v{V_T0}, {sr(SRD4, 4)}, 0 offen
    s_endpgm
    """)


LA_X = 0
LA_S = 65536
LA_T = 73728
LA_ROW = 144
LA_TILE = 32 * LA_ROW
LA_END = LA_T + 8 * 2 * LA_TILE


def stage_attnA(a):
    QF = 160
    ACC = 176
    V_S = 208
    TX = 240
    V_P = 8
    V_WT, V_XW, V_XR, V_TR, V_M = 3, 4, 5, 6, 7
    V_AF = 24
    V_L, V_NMC, V_TM, V_RS = 252, 253, 254, 255
    a(f"s_lshl_b32 s{S_OFF}, s{S_B}, 15")
    make_srd(a, SRD1, P_WS, S_OFF, 32768)
    a(f"""
    v_and_b32 v{V_T0}, 31, v{V_LANE}
    v_lshrrev_b32 v{V_T1}, 5, v{V_LANE}
    v_lshlrev_b32 v{V_T3}, 4, v{V_T1}
    v_lshlrev_b32 v{V_T2}, 10, v{V_T0}
    v_add_u32 v{V_T2}, v{V_T2}, v{V_T3}
    s_lshl_b32 s{S_T0}, s{S_WAVE}, 7
    v_add_u32 v{V_T2}, s{S_T0}, v{V_T2}
    """)
    for kk in range(4):
        a(f"buffer_load_dwordx4 {vr(QF + 4 * kk, 4)}, v{V_T2}, {sr(SRD1, 4)}, 0 offen offset:{32 * kk} sc1")
    a(f"""
    s_mul_i32 s{S_T0}, s{S_WAVE}, {2 * LA_TILE}
    s_add_u32 s{S_T0}, s{S_T0}, {LA_T}
    v_mul_u32_u24 v{V_AF}, {LA_ROW}, v{V_T0}
    v_add_u32 v{V_AF}, v{V_AF}, v{V_T3}
    v_add_u32 v{V_AF}, s{S_T0}, v{V_AF}
    v_lshrrev_b32 v13, 3, v{V_LANE}
    v_mul_u32_u24 v13, {LA_ROW}, v13
    v_and_b32 v14, 7, v{V_LANE}
    v_lshlrev_b32 v14, 4, v14
    v_add_u32 v13, v13, v14
    v_add_u32 v13, s{S_T0}, v13
    v_lshlrev_b32 v14, 4, v{V_LANE}
    s_lshl_b32 s{S_T1}, s{S_WAVE}, 13
    v_add_u32 v15, s{S_T1}, v14
    s_lshr_b32 s{S_T1}, s{S_WAVE}, 1
    s_lshl_b32 s{S_T1}, s{S_T1}, 10
    s_and_b32 s{S_T2}, s{S_WAVE}, 1
    s_lshl_b32 s{S_T2}, s{S_T2}, 3
    s_add_u32 s{S_T1}, s{S_T1}, s{S_T2}
    v_add_u32 v{V_RS}, s{S_T1}, v14
    """)
    a(f"""
    v_lshrrev_b32 v{V_T0}, 1, v{V_G}
    v_lshlrev_b32 v{V_T0}, 2, v{V_T0}
    v_lshrrev_b32 v{V_T1}, 2, v{V_L15}
    v_add_u32 v{V_T0}, v{V_T0}, v{V_T1}
    v_mul_u32_u24 v{V_T0}, {LA_ROW}, v{V_T0}
    v_and_b32 v{V_T1}, 1, v{V_G}
    v_lshlrev_b32 v{V_T1}, 5, v{V_T1}
    v_add_u32 v{V_T0}, v{V_T0}, v{V_T1}
    v_and_b32 v{V_T1}, 3, v{V_L15}
    v_lshlrev_b32 v{V_T1}, 3, v{V_T1}
    v_add_u32 v{V_T0}, v{V_T0}, v{V_T1}
    v_add_u32 v{V_TR}, s{S_T0}, v{V_T0}
    v_mov_b32 v{V_WT}, v13
    v_add_u32 v{V_XR}, {LA_S}, v14
    v_add_u32 v25, {LA_S}, v{V_RS}
    v_mov_b32 v{V_XW}, v15
    v_mov_b32 v{V_M}, 0xff800000
    v_mov_b32 v{V_L}, 0
    v_mov_b32 v{V_NMC}, 0
    """)
    for i in range(32):
        a(f"v_mov_b32 v{ACC + i}, 0")
    a("s_waitcnt vmcnt(0)")
    stamp(a, 6)
    rare_blocks = []

    def rnd(C):
        rare = a.new("arare")
        back = a.new("aback")
        for tl in range(2):
            for kk in range(4):
                a(f"ds_write_b128 v{V_WT}, {vr(C + 16 * tl + 4 * kk, 4)} offset:{tl * LA_TILE + kk * 8 * LA_ROW}")
        a("s_waitcnt lgkmcnt(0)")
        for tl in range(2):
            for kk in range(4):
                a(f"ds_read_b128 {vr(V_P + 4 * kk, 4)}, v{V_AF} offset:{tl * LA_TILE + 32 * kk}")
            for kk in range(4):
                a(f"s_waitcnt lgkmcnt({3 - kk})")
                c = "0" if kk == 0 else vr(V_S + 16 * tl, 16)
                a(f"v_mfma_f32_32x32x16_bf16 {vr(V_S + 16 * tl, 16)}, {vr(V_P + 4 * kk, 4)}, {vr(QF + 4 * kk, 4)}, {c}")
        a("s_nop 7")
        for q in range(4):
            a(f"ds_write_b128 v{V_XW}, {vr(V_S + 4 * q, 4)} offset:{LA_X + q * 1024}")
        a("s_nop 3")
        for q in range(4):
            a(f"ds_write_b128 v{V_XW}, {vr(V_S + 16 + 4 * q, 4)} offset:{LA_X + 4096 + q * 1024}")
        a("s_waitcnt lgkmcnt(0)")
        a("s_barrier")
        for tl in range(2):
            for w in range(8):
                a(f"ds_read_b64 {vr(V_S + 16 * tl + 2 * w, 2)}, v{V_RS} offset:{LA_X + w * 8192 + tl * 4096}")
        for tl in range(2):
            for w in range(1, 8):
                a(f"s_waitcnt lgkmcnt({15 - 8 * tl - w})")
                a(f"v_add_f32 v{V_S + 16 * tl}, v{V_S + 16 * tl}, v{V_S + 16 * tl + 2 * w}")
                a(f"v_add_f32 v{V_S + 16 * tl + 1}, v{V_S + 16 * tl + 1}, v{V_S + 16 * tl + 2 * w + 1}")
        a(f"""
        ds_write_b64 v25, {vr(V_S, 2)}
        ds_write_b64 v25, {vr(V_S + 16, 2)} offset:4096
        s_waitcnt lgkmcnt(0)
        s_barrier
        """)
        for q in range(8):
            a(f"ds_read_b128 {vr(V_S + 4 * q, 4)}, v{V_XR} offset:{q * 1024}")
        units = [(tl, ct, kh) for tl in range(2) for kh in range(2) for ct in range(2)]

        def trread(u):
            tl, ct, kh = units[u]
            t = TX + 4 * (u % 3)
            base = tl * LA_TILE + (kh * 16) * LA_ROW + ct * 64
            a(f"ds_read_b64_tr_b16 {vr(t, 2)}, v{V_TR} offset:{base}")
            a(f"ds_read_b64_tr_b16 {vr(t + 2, 2)}, v{V_TR} offset:{base + 8 * LA_ROW}")
        for u in range(3):
            trread(u)
        a("s_waitcnt lgkmcnt(6)")
        a(f"v_max3_f32 v{V_TM}, v{V_S}, v{V_S + 1}, v{V_S + 2}")
        for k in range(3, 31, 2):
            a(f"v_max3_f32 v{V_TM}, v{V_TM}, v{V_S + k}, v{V_S + k + 1}")
        a(f"""
        v_max_f32 v{V_TM}, v{V_TM}, v{V_S + 31}
        v_cmp_gt_f32 vcc, v{V_TM}, v{V_M}
        s_cbranch_vccnz {rare}
        """)
        a.label(back)
        for i in range(32):
            a(f"v_fma_f32 v{V_S + i}, v{V_S + i}, s{S_C}, v{V_NMC}")
        for i in range(32):
            a(f"v_exp_f32 v{V_S + i}, v{V_S + i}")
        a("s_nop 0")
        for i in range(16):
            a(f"v_cvt_pk_bf16_f32 v{V_P + i}, v{V_S + 2 * i}, v{V_S + 2 * i + 1}")
        a("s_nop 1")
        adds = []
        for st in (1, 2, 4, 8, 16):
            for i in range(0, 32, 2 * st):
                adds.append(f"v_add_f32 v{V_S + i}, v{V_S + i}, v{V_S + i + st}")
        adds.append(f"v_add_f32 v{V_L}, v{V_L}, v{V_S}")
        for u in range(8):
            tl, ct, kh = units[u]
            t = TX + 4 * (u % 3)
            a(f"s_waitcnt lgkmcnt({2 * min(2, 7 - u)})")
            a(f"v_mfma_f32_32x32x16_bf16 {vr(ACC + 16 * ct, 16)}, {vr(t, 4)}, {vr(V_P + 8 * tl + 4 * kh, 4)}, {vr(ACC + 16 * ct, 16)}")
            if u + 3 < 8:
                trread(u + 3)
            for x in adds[4 * u: 4 * u + 4]:
                a(x)
        rare_blocks.append((rare, back))

    for r in range(4):
        rnd(A_C + 32 * r)
        if r == 0:
            stamp(a, 7)
    done = a.new("adone")
    a(f"s_branch {done}")
    for rare, back in rare_blocks:
        a.label(rare)
        a(f"""
        v_mov_b32 v{V_P}, v{V_TM}
        v_mov_b32 v{V_P + 1}, v{V_TM}
        s_nop 1
        v_permlane32_swap_b32 v{V_P}, v{V_P + 1}
        s_nop 1
        v_max3_f32 v{V_TM}, v{V_P}, v{V_P + 1}, v{V_M}
        v_sub_f32 v{V_P}, v{V_M}, v{V_TM}
        v_mul_f32 v{V_P}, s{S_C}, v{V_P}
        v_exp_f32 v{V_P}, v{V_P}
        v_mov_b32 v{V_M}, v{V_TM}
        v_mul_f32 v{V_NMC}, s{S_C}, v{V_TM}
        v_sub_f32 v{V_NMC}, 0, v{V_NMC}
        v_mul_f32 v{V_L}, v{V_L}, v{V_P}
        """)
        for i in range(32):
            a(f"v_mul_f32 v{ACC + i}, v{ACC + i}, v{V_P}")
        a(f"s_branch {back}")
    a.label(done)
    a(f"""
    s_lshl_b32 s{S_T0}, s2, 16
    s_add_u32 s{S_OFF}, s{S_T0}, {WS_APART}
    """)
    make_srd(a, SRD2, P_WS, S_OFF, 65536)
    a(f"""
    s_lshl_b32 s{S_T0}, s{S_B}, 13
    s_lshl_b32 s{S_T1}, s{S_Q}, 3
    s_add_u32 s{S_T0}, s{S_T0}, s{S_T1}
    s_add_u32 s{S_OFF}, s{S_T0}, {WS_ASTAT}
    """)
    make_srd(a, SRD3, P_WS, S_OFF, 8192 - 248)
    a(f"""
    s_mul_i32 s{S_T0}, s{S_WAVE}, {2 * LA_TILE}
    s_add_u32 s{S_T0}, s{S_T0}, {LA_T}
    v_and_b32 v{TX}, 31, v{V_LANE}
    v_lshrrev_b32 v{TX + 1}, 5, v{V_LANE}
    v_mul_u32_u24 v{TX + 2}, 272, v{TX}
    v_lshlrev_b32 v{TX + 1}, 4, v{TX + 1}
    v_add_u32 v{TX + 2}, v{TX + 2}, v{TX + 1}
    v_add_u32 v{TX + 2}, s{S_T0}, v{TX + 2}
    v_lshrrev_b32 v{TX + 3}, 4, v{V_LANE}
    v_and_b32 v{TX + 4}, 15, v{V_LANE}
    v_lshlrev_b32 v{TX + 4}, 4, v{TX + 4}
    v_mul_u32_u24 v{TX + 5}, 272, v{TX + 3}
    v_add_u32 v{TX + 5}, v{TX + 5}, v{TX + 4}
    v_add_u32 v{TX + 5}, s{S_T0}, v{TX + 5}
    v_lshlrev_b32 v{TX + 6}, 11, v{TX + 3}
    v_add_u32 v{TX + 6}, v{TX + 6}, v{TX + 4}
    s_lshl_b32 s{S_T0}, s{S_WAVE}, 8
    v_add_u32 v{TX + 6}, s{S_T0}, v{TX + 6}
    s_nop 7
    s_nop 3
    """)
    for ct in range(2):
        for q4 in range(4):
            a(f"ds_write_b128 v{TX + 2}, {vr(ACC + 16 * ct + 4 * q4, 4)} offset:{ct * 128 + q4 * 32}")
    a("s_waitcnt lgkmcnt(0)")
    for j in range(8):
        a(f"ds_read_b128 {vr(ACC + 4 * j, 4)}, v{TX + 5} offset:{j * 4 * 272}")
    a(f"s_mov_b32 s{S_T0}, 0")
    for j in range(8):
        a(f"s_waitcnt lgkmcnt({7 - j})")
        a(f"buffer_store_dwordx4 {vr(ACC + 4 * j, 4)}, v{TX + 6}, {sr(SRD2, 4)}, s{S_T0} offen sc1")
        if j != 7:
            a(f"s_add_u32 s{S_T0}, s{S_T0}, 8192")
    a(f"""
    v_mov_b32 v{TX + 8}, v{V_L}
    v_mov_b32 v{TX + 9}, v{V_L}
    s_nop 1
    v_permlane32_swap_b32 v{TX + 8}, v{TX + 9}
    s_nop 1
    v_add_f32 v{TX + 11}, v{TX + 8}, v{TX + 9}
    v_mov_b32 v{TX + 10}, v{V_M}
    v_lshlrev_b32 v{TX + 3}, 8, v{V_TID}
    buffer_store_dwordx2 {vr(TX + 10, 2)}, v{TX + 3}, {sr(SRD3, 4)}, 0 offen sc1
    """)


F_WUV = [128 + 4 * i for i in range(16)]
F_WO = [192 + 4 * i for i in range(16)]


def finishA_prefetch(a):
    a(f"""
    s_and_b32 s{S_H}, s2, 31
    s_lshr_b32 s{S_B}, s2, 5
    s_lshl_b32 s{S_OFF}, s{S_H}, 8
    """)
    make_srd(a, SRD2, P_WUV, S_OFF, 0)
    a(f"s_sub_u32 s{SRD2 + 2}, {512 * 8192}, s{S_OFF}")
    a(f"s_lshl_b32 s{S_OFF}, s{S_H}, 17")
    make_srd(a, SRD3, P_AWO, S_OFF, 131072)
    gemv512_wloads(a, SRD2, F_WUV)
    proj_addr(a, 31)
    for i in range(16):
        proj_load(a, SRD3, 31, F_WO, i)


def stage_finishA(a):
    a(f"""
    s_lshl_b32 s{S_T0}, s{S_B}, 21
    s_lshl_b32 s{S_T1}, s{S_H}, 11
    s_add_u32 s{S_T0}, s{S_T0}, s{S_T1}
    s_add_u32 s{S_OFF}, s{S_T0}, {WS_APART}
    """)
    make_srd(a, SRD0, P_WS, S_OFF, 31 * 65536 + 2048)
    a(f"""
    s_lshl_b32 s{S_T0}, s{S_B}, 13
    s_lshl_b32 s{S_T1}, s{S_H}, 8
    s_add_u32 s{S_T0}, s{S_T0}, s{S_T1}
    s_add_u32 s{S_OFF}, s{S_T0}, {WS_ASTAT}
    """)
    make_srd(a, SRD1, P_WS, S_OFF, 256)
    a(f"""
    s_lshl_b32 s{S_T0}, s{S_H}, 12
    s_lshl_b32 s{S_T1}, s{S_B}, 11
    s_add_u32 s{S_T0}, s{S_T0}, s{S_T1}
    s_add_u32 s{S_OFF}, s{S_T0}, {WS_YA}
    """)
    make_srd(a, SRD4, P_WS, S_OFF, 2048)
    STAT = 32
    PART = 96
    a(f"""
    v_lshrrev_b32 v{V_T0}, 7, v{V_TID}
    v_and_b32 v{V_T1}, 127, v{V_TID}
    v_lshlrev_b32 v{V_T2}, 19, v{V_T0}
    v_lshlrev_b32 v{V_T3}, 4, v{V_T1}
    v_add_u32 v{V_T2}, v{V_T2}, v{V_T3}
    v_mov_b32 v{V_T3}, 0
    s_mov_b32 s{S_T0}, 0
    """)
    for k in range(16):
        a(f"buffer_load_dwordx4 {vr(STAT + 4 * k, 4)}, v{V_T3}, {sr(SRD1, 4)}, 0 offen offset:{16 * k} sc1")
    for k in range(8):
        a(f"buffer_load_dwordx4 {vr(PART + 4 * k, 4)}, v{V_T2}, {sr(SRD0, 4)}, s{S_T0} offen sc1")
        if k != 7:
            a(f"s_add_u32 s{S_T0}, s{S_T0}, 65536")
    a("s_waitcnt vmcnt(8)")
    MG, LG = 12, 13
    a(f"v_max_f32 v{MG}, v{STAT}, v{STAT + 2}")
    for k in range(2, 32, 2):
        a(f"v_max3_f32 v{MG}, v{MG}, v{STAT + 2 * k}, v{STAT + 2 * k + 2}")
    for k in range(32):
        a(f"""
        v_sub_f32 v{STAT + 2 * k}, v{STAT + 2 * k}, v{MG}
        v_mul_f32 v{STAT + 2 * k}, s{S_C}, v{STAT + 2 * k}
        v_exp_f32 v{STAT + 2 * k}, v{STAT + 2 * k}
        """)
    a(f"s_nop 0\nv_mul_f32 v{LG}, v{STAT}, v{STAT + 1}")
    for k in range(1, 32):
        a(f"v_fmac_f32 v{LG}, v{STAT + 2 * k}, v{STAT + 2 * k + 1}")
    a(f"v_rcp_f32 v{LG}, v{LG}")
    a(f"s_lshr_b32 s{S_T1}, s{S_WAVE}, 1")
    for g in range(4):
        a(f"s_cmp_eq_u32 s{S_T1}, {g}\ns_cselect_b64 vcc, -1, 0")
        for k in range(8):
            if g == 0:
                a(f"v_mov_b32 v{16 + k}, v{STAT + 2 * k}")
            else:
                a(f"v_cndmask_b32 v{16 + k}, v{16 + k}, v{STAT + 2 * (8 * g + k)}, vcc")
    a("s_waitcnt vmcnt(0)")
    for i in range(4):
        a(f"v_mul_f32 v{24 + i}, v16, v{PART + i}")
    for k in range(1, 8):
        for i in range(4):
            a(f"v_fmac_f32 v{24 + i}, v{16 + k}, v{PART + 4 * k + i}")
    for i in range(4):
        a(f"v_mul_f32 v{24 + i}, v{24 + i}, v{LG}")
    a(f"""
    v_lshlrev_b32 v{V_T0}, 4, v{V_TID}
    ds_write_b128 v{V_T0}, {vr(24, 4)} offset:{L_YP}
    s_waitcnt lgkmcnt(0)
    s_barrier
    v_and_b32 v{V_T1}, 255, v{V_TID}
    v_lshlrev_b32 v{V_T0}, 3, v{V_T1}
    ds_read_b64 {vr(16, 2)}, v{V_T0} offset:{L_YP}
    ds_read_b64 {vr(18, 2)}, v{V_T0} offset:{L_YP + 2048}
    ds_read_b64 {vr(20, 2)}, v{V_T0} offset:{L_YP + 4096}
    ds_read_b64 {vr(22, 2)}, v{V_T0} offset:{L_YP + 6144}
    s_waitcnt lgkmcnt(0)
    v_add_f32 v16, v16, v18
    v_add_f32 v17, v17, v19
    v_add_f32 v20, v20, v22
    v_add_f32 v21, v21, v23
    v_add_f32 v16, v16, v20
    v_add_f32 v17, v17, v21
    v_cvt_pk_bf16_f32 v16, v16, v17
    v_lshlrev_b32 v{V_T0}, 2, v{V_TID}
    ds_write_b32 v{V_T0}, v16 offset:{L_BF}
    s_waitcnt lgkmcnt(0)
    s_barrier
    """)
    gemv512_xload(a, ('lds', L_BF), 16)
    gemv512_compute(a, F_WUV, 16, 24, 28, None)
    proj_compute(a, L_BF2, True, F_WO, 16, 24, 28, waits=False)
    a(f"""
    v_lshlrev_b32 v{V_T0}, 2, v{V_TID}
    ds_read_b32 v12, v{V_T0} offset:{L_YP}
    ds_read_b32 v13, v{V_T0} offset:{L_YP + 4096}
    s_waitcnt lgkmcnt(0)
    v_add_f32 v12, v12, v13
    buffer_store_dword v12, v{V_T0}, {sr(SRD4, 4)}, 0 offen sc1
    """)


def gen_main(a):
    a.raw(".p2align 8")
    a.label("main_kernel")
    a(f"s_cmp_ge_u32 s2, {NA_WG + NB_WG}\ns_cbranch_scc1 L_main_end")
    load_kernargs(a)
    lane_setup(a)
    make_masks(a)
    perm_consts(a)
    a("s_waitcnt lgkmcnt(0)")
    a(f"s_cmp_lt_u32 s2, {NA_WG}\ns_cbranch_scc1 L_main_A")
    if "noB" in EXP:
        a("s_endpgm")
    gen_B_role(a)
    a.label("L_main_A")
    if "noA" in EXP:
        a("s_endpgm")
    make_srd(a, SRD_DBG, P_DBG, None, 256)
    stamp(a, 0)
    stage_prepA(a)
    stamp(a, 1)
    sync_arrive(a, 0)
    attnA_preload(a)
    sync_wait(a, 0, NA_WG)
    stamp(a, 2)
    stage_attnA(a)
    stamp(a, 3)
    sync_arrive(a, 128)
    lane_setup(a)
    make_masks(a)
    finishA_prefetch(a)
    sync_wait(a, 128, NA_WG)
    stamp(a, 4)
    stage_finishA(a)
    stamp(a, 5)
    dstamp(a, 10)
    a.label("L_main_end")
    a("s_endpgm")


def gen_final(a):
    a.raw(".p2align 8")
    a.label("final_kernel")
    a("s_cmp_ge_u32 s2, 32\ns_cbranch_scc1 L_final_end")
    load_kernargs(a)
    lane_setup(a)
    a("s_waitcnt lgkmcnt(0)")
    a(f"""
    s_and_b32 s{S_Q}, s2, 7
    s_lshr_b32 s{S_B}, s2, 3
    s_and_b32 s{S_B}, s{S_B}, 1
    """)
    make_srd(a, SRD4, P_OUT, None, 4096)
    ACC = 12
    a("s_cmp_ge_u32 s2, 16\ns_cbranch_scc1 L_final_B")
    make_srd_imm(a, SRD0, P_WS, WS_YA, 32 * 4096)
    a(f"""
    s_lshl_b32 s{S_T0}, s{S_B}, 11
    s_lshl_b32 s{S_T1}, s{S_Q}, 8
    s_add_u32 s{S_T0}, s{S_T0}, s{S_T1}
    s_lshl_b32 s{S_T1}, s{S_WAVE}, 14
    s_add_u32 s{S_T0}, s{S_T0}, s{S_T1}
    v_lshlrev_b32 v{V_T0}, 2, v{V_LANE}
    v_add_u32 v{V_T0}, s{S_T0}, v{V_T0}
    s_mov_b32 s{S_T1}, 4096
    s_mov_b32 s{S_T2}, 8192
    s_mov_b32 s{S_T3}, 12288
    buffer_load_dword v16, v{V_T0}, {sr(SRD0, 4)}, 0 offen
    buffer_load_dword v17, v{V_T0}, {sr(SRD0, 4)}, s{S_T1} offen
    buffer_load_dword v18, v{V_T0}, {sr(SRD0, 4)}, s{S_T2} offen
    buffer_load_dword v19, v{V_T0}, {sr(SRD0, 4)}, s{S_T3} offen
    s_waitcnt vmcnt(0)
    v_add_f32 v16, v16, v17
    v_add_f32 v18, v18, v19
    v_add_f32 v{ACC}, v16, v18
    s_mov_b32 s{S_T5}, 0
    s_branch L_final_red
    """)
    a.label("L_final_B")
    make_srd_imm(a, SRD0, P_WS, WS_YB, 2 * 32 * 4 * 2048)
    make_srd_imm(a, SRD1, P_WS, WS_BSTAT, 2 * 32 * 32)
    a(f"""
    s_lshl_b32 s{S_T0}, s{S_B}, 5
    s_lshl_b32 s{S_T1}, s{S_WAVE}, 2
    s_add_u32 s{S_T0}, s{S_T0}, s{S_T1}
    s_lshl_b32 s{S_T1}, s{S_T0}, 13
    s_lshl_b32 s{S_T2}, s{S_Q}, 8
    s_add_u32 s{S_T1}, s{S_T1}, s{S_T2}
    v_lshlrev_b32 v{V_T0}, 2, v{V_LANE}
    v_add_u32 v{V_T0}, s{S_T1}, v{V_T0}
    s_lshl_b32 s{S_T1}, s{S_T0}, 5
    v_mov_b32 v{V_T1}, s{S_T1}
    """)
    ST = 32
    Y = 64
    for k in range(4):
        a(f"buffer_load_dwordx4 {vr(ST + 8 * k, 4)}, v{V_T1}, {sr(SRD1, 4)}, 0 offen offset:{32 * k}")
        a(f"buffer_load_dwordx4 {vr(ST + 8 * k + 4, 4)}, v{V_T1}, {sr(SRD1, 4)}, 0 offen offset:{32 * k + 16}")
    a(f"s_mov_b32 s{S_T1}, 0")
    for k in range(4):
        for s in range(3):
            a(f"buffer_load_dword v{Y + 4 * k + s}, v{V_T0}, {sr(SRD0, 4)}, s{S_T1} offen")
            if not (k == 3 and s == 2):
                a(f"s_add_u32 s{S_T1}, s{S_T1}, {2048 if s != 2 else 4096}")
    a(f"s_waitcnt vmcnt(0)\nv_mov_b32 v{ACC}, 0")
    for k in range(4):
        b = ST + 8 * k
        a(f"""
        v_max3_f32 v16, v{b}, v{b + 2}, v{b + 4}
        """)
        for s in range(3):
            a(f"""
            v_sub_f32 v{b + 2 * s}, v{b + 2 * s}, v16
            v_mul_f32 v{b + 2 * s}, s{S_C}, v{b + 2 * s}
            v_exp_f32 v{b + 2 * s}, v{b + 2 * s}
            """)
        a(f"s_nop 0\nv_mul_f32 v17, v{b}, v{b + 1}\nv_mul_f32 v18, v{b}, v{Y + 4 * k}")
        for s in range(1, 3):
            a(f"v_fmac_f32 v17, v{b + 2 * s}, v{b + 2 * s + 1}\nv_fmac_f32 v18, v{b + 2 * s}, v{Y + 4 * k + s}")
        a(f"v_rcp_f32 v17, v17\ns_nop 0\nv_fmac_f32 v{ACC}, v18, v17")
    a(f"s_mov_b32 s{S_T5}, 1024")
    a.label("L_final_red")
    a(f"""
    v_lshlrev_b32 v{V_T0}, 2, v{V_TID}
    ds_write_b32 v{V_T0}, v{ACC}
    s_waitcnt lgkmcnt(0)
    s_barrier
    s_cmp_lg_u32 s{S_WAVE}, 0
    s_cbranch_scc1 L_final_end
    """)
    for w in range(8):
        a(f"ds_read_b32 v{16 + w}, v{V_T0} offset:{256 * w}")
    a("s_waitcnt lgkmcnt(0)")
    for w in range(1, 8):
        a(f"v_add_f32 v16, v16, v{16 + w}")
    a(f"""
    v_cvt_pk_bf16_f32 v16, v16, v16
    s_lshl_b32 s{S_T0}, s{S_B}, 11
    s_lshl_b32 s{S_T1}, s{S_Q}, 7
    s_add_u32 s{S_T0}, s{S_T0}, s{S_T1}
    s_add_u32 s{S_T0}, s{S_T0}, s{S_T5}
    v_lshlrev_b32 v{V_T0}, 1, v{V_LANE}
    buffer_store_short v16, v{V_T0}, {sr(SRD4, 4)}, s{S_T0} offen
    """)
    a.label("L_final_end")
    a("s_endpgm")


def descriptor(name, vgpr):
    return f"""
.amdhsa_kernel {name}
  .amdhsa_next_free_vgpr {vgpr}
  .amdhsa_next_free_sgpr 100
  .amdhsa_accum_offset {(vgpr + 3) // 4 * 4}
  .amdhsa_group_segment_fixed_size 0
  .amdhsa_kernarg_size 112
  .amdhsa_user_sgpr_count 2
  .amdhsa_user_sgpr_kernarg_segment_ptr 1
  .amdhsa_system_sgpr_workgroup_id_x 1
.end_amdhsa_kernel
"""


def main():
    a = Asm()
    gen_main(a)
    gen_final(a)
    launches = [
        ("main_kernel", NA_WG + NB_WG, LA_END),
        ("final_kernel", 32, 2048),
    ]
    txt = HEADER
    for k, g, lds in launches:
        txt += f"; @launch kernel={k} grid=({g},1,1) block=(512,1,1) lds={lds}\n"
    txt += '.amdgcn_target "amdgcn-amd-amdhsa--gfx950"\n.text\n'
    for k, _, _ in launches:
        txt += f".globl {k}\n.type {k},@function\n"
    txt += a.text()
    txt += '.section .rodata,"a"\n.p2align 6\n'
    for k, _, _ in launches:
        txt += ".p2align 6\n" + descriptor(k, NVGPR if k == 'main_kernel' else 128)
    open(OUT, "w").write(txt)
    print("wrote", OUT, len(txt))


if __name__ == "__main__":
    main()
```

```python
import os
import struct
import sys

EXP = os.environ.get("EXP", "")

NAME = "concat_heads__compressed_kv_cla__mha_block_cached__decode"
OUT = os.environ.get("OUTS", f"cdna_kernels/{NAME}.s")

KNAME = NAME + "_kernel"
HEADER = """; Kernarg layout for this problem (112 bytes, ptrs only, base s[0:1]):
"""


def f32bits(x):
    return struct.unpack("<I", struct.pack("<f", x))[0]


import math
CSCALE = (128 ** -0.5) * math.log2(math.e)

NSA = 32
WS_QP = 0
WS_APART = 0x10000
WS_ASTAT = WS_APART + 2 * NSA * 32 * 512 * 4
WS_YA = WS_ASTAT + 0x10000
WS_YB = WS_YA + 32 * 2 * 512 * 4
WS_BSTAT = WS_YB + 2 * 32 * 4 * 512 * 4
WS_END = WS_BSTAT + 0x10000

NA_WG = 2 * NSA
NB_WG = 192
NVGPR = 256


class Asm:
    def __init__(self):
        self.lines = []
        self.uid = 0

    def __call__(self, s):
        for ln in s.strip("\n").split("\n"):
            ln = ln.strip()
            if ln:
                self.lines.append("    " + ln)

    def label(self, l):
        self.lines.append(l + ":")

    def new(self, base):
        self.uid += 1
        return f"L_{base}_{self.uid}"

    def raw(self, s):
        self.lines.append(s)

    def text(self):
        return "\n".join(self.lines) + "\n"


def vr(a, n):
    return f"v[{a}:{a + n - 1}]"


def sr(a, n):
    return f"s[{a}:{a + n - 1}]"


P_AX, P_CKV, P_AWQ, P_WUK, P_WUV, P_AWO, P_BX, P_BK = 16, 18, 20, 22, 24, 26, 28, 30
P_BV, P_BWQ, P_BWO, P_OUT = 32, 34, 36, 38
P_DBG, P_WS = 40, 42
SRD0, SRD1, SRD2, SRD3, SRD4 = 44, 48, 52, 56, 60
S_WAVE = 64
S_C = 65
S_T0, S_T1, S_T2, S_T3, S_T4, S_T5 = 66, 67, 68, 69, 70, 71
S_H, S_B, S_Q = 72, 73, 74
S_LOOP = 75
S_OFF = 76
S_SAVE = 78
S_R0, S_R1, S_R2, S_R3 = 80, 81, 82, 83

V_TID = 0
V_LANE = 1
V_L15 = 2
V_G = 3
V_MASK = 4
V_T0, V_T1, V_T2, V_T3 = 8, 9, 10, 11


def load_kernargs(a):
    a(f"""
    s_load_dwordx16 {sr(16, 16)}, s[0:1], 0
    s_load_dwordx8 {sr(32, 8)}, s[0:1], 64
    s_load_dwordx4 {sr(40, 4)}, s[0:1], 96
    """)


def lane_setup(a):
    a(f"""
    v_and_b32 v{V_LANE}, 63, v{V_TID}
    v_lshrrev_b32 v{V_T0}, 6, v{V_TID}
    v_and_b32 v{V_L15}, 15, v{V_LANE}
    v_readfirstlane_b32 s{S_WAVE}, v{V_T0}
    v_lshrrev_b32 v{V_G}, 4, v{V_LANE}
    s_mov_b32 s{S_C}, {f32bits(CSCALE):#x}
    """)


def make_masks(a):
    a(f"""
    v_and_b32 v{V_T0}, 7, v{V_LANE}
    v_lshrrev_b32 v{V_T1}, 1, v{V_T0}
    v_and_b32 v{V_T0}, 1, v{V_T0}
    v_lshlrev_b32 v{V_T0}, 4, v{V_T0}
    v_mov_b32 v{V_T2}, 0xffff
    v_lshlrev_b32 v{V_T2}, v{V_T0}, v{V_T2}
    """)
    for j in range(4):
        a(f"""
        v_cmp_eq_u32 vcc, {j}, v{V_T1}
        s_nop 1
        v_cndmask_b32 v{V_MASK + j}, 0, v{V_T2}, vcc
        """)


def make_srd(a, srd, ptr, off_sgpr, nbytes):
    if off_sgpr is None:
        a(f"s_mov_b32 s{srd}, s{ptr}\ns_mov_b32 s{srd + 1}, s{ptr + 1}")
    else:
        a(f"s_add_u32 s{srd}, s{ptr}, s{off_sgpr}\ns_addc_u32 s{srd + 1}, s{ptr + 1}, 0")
    a(f"s_mov_b32 s{srd + 2}, {nbytes:#x}\ns_mov_b32 s{srd + 3}, 0x00020000")


def make_srd_imm(a, srd, ptr, off, nbytes):
    a(f"s_add_u32 s{srd}, s{ptr}, {off:#x}\ns_addc_u32 s{srd + 1}, s{ptr + 1}, 0")
    a(f"s_mov_b32 s{srd + 2}, {nbytes:#x}\ns_mov_b32 s{srd + 3}, 0x00020000")


def delta_mfma(a, xregs, i, data, acc, tmp, first=False):
    sel = S_R0 if (i & 1) == 0 else S_R1
    a(f"v_perm_b32 v{tmp + 4}, v{xregs + (i >> 1)}, v{xregs + (i >> 1)}, s{sel}")
    for j in range(4):
        a(f"v_and_b32 v{tmp + j}, v{tmp + 4}, v{V_MASK + j}")
    a("s_nop 1")
    c = "0" if first else vr(acc, 4)
    a(f"v_mfma_f32_16x16x32_bf16 {vr(acc, 4)}, {vr(tmp, 4)}, {vr(data, 4)}, {c}")


def perm_consts(a):
    a(f"s_mov_b32 s{S_R0}, 0x01000100\ns_mov_b32 s{S_R1}, 0x03020302")


L_PART = 0
L_BF = 8192
L_BF2 = 10240
L_STAT = 11264
L_YP = 12288
L_END_SMALL = 20480


def gemv512_xload(a, xsrc, xregs):
    a(f"""
    v_lshrrev_b32 v{V_T0}, 3, v{V_L15}
    v_lshlrev_b32 v{V_T0}, 10, v{V_T0}
    v_lshlrev_b32 v{V_T1}, 5, v{V_G}
    v_add_u32 v{V_T0}, v{V_T0}, v{V_T1}
    s_lshl_b32 s{S_T0}, s{S_WAVE}, 7
    v_add_u32 v{V_T0}, s{S_T0}, v{V_T0}
    """)
    if xsrc[0] == 'global':
        a(f"""
        buffer_load_dwordx4 {vr(xregs, 4)}, v{V_T0}, {sr(xsrc[1], 4)}, 0 offen
        buffer_load_dwordx4 {vr(xregs + 4, 4)}, v{V_T0}, {sr(xsrc[1], 4)}, 0 offen offset:16
        """)
    else:
        a(f"""
        ds_read_b128 {vr(xregs, 4)}, v{V_T0} offset:{xsrc[1]}
        ds_read_b128 {vr(xregs + 4, 4)}, v{V_T0} offset:{xsrc[1] + 16}
        s_waitcnt lgkmcnt(0)
        """)


def gemv512_wloads(a, srd_w, wbuf):
    a(f"""
    v_lshlrev_b32 v{V_T1}, 17, v{V_G}
    v_lshlrev_b32 v{V_T2}, 4, v{V_L15}
    v_add_u32 v{V_T1}, v{V_T1}, v{V_T2}
    s_lshl_b32 s{S_T0}, s{S_WAVE}, 19
    """)
    for i in range(16):
        a(f"buffer_load_dwordx4 {vr(wbuf[i], 4)}, v{V_T1}, {sr(srd_w, 4)}, s{S_T0} offen")
        if i != 15:
            a(f"s_add_u32 s{S_T0}, s{S_T0}, 8192")


def gemv512_compute(a, wbuf, xregs, acc, tmp, nyounger):
    for i in range(16):
        if nyounger is not None:
            a(f"s_waitcnt vmcnt({15 - i + nyounger})")
        delta_mfma(a, xregs, i, wbuf[i], acc, tmp, first=(i == 0))
    a(f"""
    v_lshrrev_b32 v{V_T0}, 1, v{V_G}
    v_lshlrev_b32 v{V_T0}, 9, v{V_T0}
    v_lshlrev_b32 v{V_T1}, 5, v{V_L15}
    v_add_u32 v{V_T0}, v{V_T0}, v{V_T1}
    v_and_b32 v{V_T1}, 1, v{V_G}
    v_lshlrev_b32 v{V_T1}, 4, v{V_T1}
    v_add_u32 v{V_T0}, v{V_T0}, v{V_T1}
    s_lshl_b32 s{S_T0}, s{S_WAVE}, 10
    v_add_u32 v{V_T0}, s{S_T0}, v{V_T0}
    s_nop 7
    ds_write_b128 v{V_T0}, {vr(acc, 4)} offset:{L_PART}
    s_waitcnt lgkmcnt(0)
    s_barrier
    """)
    a(f"""
    v_and_b32 v{V_T0}, 255, v{V_TID}
    v_lshlrev_b32 v{V_T1}, 2, v{V_T0}
    """)
    for w in range(8):
        a(f"ds_read_b32 v{xregs + w}, v{V_T1} offset:{L_PART + w * 1024}")
    a("s_waitcnt lgkmcnt(0)")
    for w in range(1, 8):
        a(f"v_add_f32 v{xregs}, v{xregs}, v{xregs + w}")
    a(f"""
    v_cvt_pk_bf16_f32 v{xregs}, v{xregs}, v{xregs}
    v_lshlrev_b32 v{V_T1}, 1, v{V_T0}
    ds_write_b16 v{V_T1}, v{xregs} offset:{L_BF2}
    s_waitcnt lgkmcnt(0)
    s_barrier
    """)


def gemv512_phase(a, srd_w, xsrc, wbuf, xregs, acc, tmp, issue_extra=None):
    gemv512_xload(a, xsrc, xregs)
    gemv512_wloads(a, srd_w, wbuf)
    nextra = issue_extra() if issue_extra is not None else 0
    gemv512_compute(a, wbuf, xregs, acc, tmp, nextra)


S_PW = 88


def proj_addr(a, v_off):
    a(f"""
    s_and_b32 s{S_T1}, s{S_WAVE}, 3
    s_lshr_b32 s{S_T2}, s{S_WAVE}, 2
    v_lshlrev_b32 v{v_off}, 14, v{V_G}
    v_lshlrev_b32 v{V_T2}, 4, v{V_L15}
    v_add_u32 v{v_off}, v{v_off}, v{V_T2}
    s_lshl_b32 s{S_PW}, s{S_T2}, 16
    s_lshl_b32 s{S_T3}, s{S_T1}, 8
    s_add_u32 s{S_PW}, s{S_PW}, s{S_T3}
    s_add_u32 s{S_PW + 1}, s{S_PW}, 4096
    s_add_u32 s{S_PW + 2}, s{S_PW}, 8192
    s_add_u32 s{S_PW + 3}, s{S_PW}, 12288
    """)


def proj_load(a, srd_w, v_off, wbuf, i):
    a(f"buffer_load_dwordx4 {vr(wbuf[i], 4)}, v{v_off}, {sr(srd_w, 4)}, s{S_PW + (i >> 2)} offen offset:{(i & 3) * 1024}")


def proj_compute(a, xlds, two_b, wbuf, xregs, acc, tmp, waits=True):
    a(f"""
    s_and_b32 s{S_T1}, s{S_WAVE}, 3
    s_lshr_b32 s{S_T2}, s{S_WAVE}, 2
    v_lshlrev_b32 v{V_T0}, 5, v{V_G}
    s_lshl_b32 s{S_T0}, s{S_T2}, 7
    v_add_u32 v{V_T0}, s{S_T0}, v{V_T0}
    """)
    if two_b:
        a(f"""
        v_lshrrev_b32 v{V_T1}, 3, v{V_L15}
        v_lshlrev_b32 v{V_T1}, 8, v{V_T1}
        v_add_u32 v{V_T0}, v{V_T0}, v{V_T1}
        """)
    a(f"""
    ds_read_b128 {vr(xregs, 4)}, v{V_T0} offset:{xlds}
    ds_read_b128 {vr(xregs + 4, 4)}, v{V_T0} offset:{xlds + 16}
    s_waitcnt lgkmcnt(0)
    """)
    for i in range(16):
        if waits:
            a(f"s_waitcnt vmcnt({15 - i})")
        delta_mfma(a, xregs, i, wbuf[i], acc, tmp, first=(i == 0))
    a(f"""
    v_lshrrev_b32 v{V_T0}, 1, v{V_G}
    v_lshlrev_b32 v{V_T0}, 11, v{V_T0}
    v_lshlrev_b32 v{V_T1}, 5, v{V_L15}
    v_add_u32 v{V_T0}, v{V_T0}, v{V_T1}
    v_and_b32 v{V_T1}, 1, v{V_G}
    v_lshlrev_b32 v{V_T1}, 4, v{V_T1}
    v_add_u32 v{V_T0}, v{V_T0}, v{V_T1}
    s_lshl_b32 s{S_T0}, s{S_T2}, 12
    s_lshl_b32 s{S_T3}, s{S_T1}, 9
    s_add_u32 s{S_T0}, s{S_T0}, s{S_T3}
    v_add_u32 v{V_T0}, s{S_T0}, v{V_T0}
    s_nop 7
    ds_write_b128 v{V_T0}, {vr(acc, 4)} offset:{L_YP}
    s_waitcnt lgkmcnt(0)
    s_barrier
    """)


def stamp(a, slot, wg=None):
    if "stamp" not in EXP:
        return
    skip = a.new("stamp")
    a(f"""
    s_cmp_lg_u32 s{S_WAVE}, 0
    s_cbranch_scc1 {skip}
    s_memrealtime s[92:93]
    s_lshl_b32 s94, s2, 5
    s_add_u32 s94, s94, {WS_END}
    s_add_u32 s96, s{P_WS}, s94
    s_addc_u32 s97, s{P_WS + 1}, 0
    s_mov_b32 s98, 32
    s_mov_b32 s99, 0x00020000
    s_waitcnt lgkmcnt(0)
    v_mov_b32 v10, s92
    v_mov_b32 v11, 0
    buffer_store_dword v10, v11, s[96:99], 0 offen offset:{slot * 4}
    """)
    a.label(skip)


def dstamp(a, slot, invert=False):
    if "dstamp" not in EXP:
        return
    skip = a.new("dstamp")
    a(f"""
    s_cmp_lg_u32 s{S_WAVE}, 0
    s_cbranch_scc1 {skip}
    s_memrealtime s[92:93]
    s_mov_b32 s96, s{P_DBG}
    s_mov_b32 s97, s{P_DBG + 1}
    s_mov_b32 s98, 256
    s_mov_b32 s99, 0x00020000
    s_waitcnt lgkmcnt(0)
    {"s_not_b32 s92, s92" if invert else ""}
    v_mov_b32 v10, s92
    v_mov_b32 v11, 0
    s_mov_b64 exec, 1
    buffer_atomic_umax v10, v11, s[96:99], 0 offen offset:{slot * 4}
    s_mov_b64 exec, -1
    """)
    a.label(skip)


SRD_DBG = 84
V_SY0, V_SY1 = 8, 9


def sync_arrive(a, cnt_off):
    skip = a.new("arr_skip")
    a(f"""
    s_waitcnt vmcnt(0) lgkmcnt(0)
    s_barrier
    s_cmp_lg_u32 s{S_WAVE}, 0
    s_cbranch_scc1 {skip}
    v_mov_b32 v{V_SY0}, 1
    v_mov_b32 v{V_SY1}, 0
    s_mov_b64 exec, 1
    buffer_atomic_add v{V_SY0}, v{V_SY1}, {sr(SRD_DBG, 4)}, 0 offen offset:{cnt_off}
    s_mov_b64 exec, -1
    """)
    a.label(skip)


def sync_wait(a, cnt_off, target):
    skip = a.new("sync_skip")
    poll = a.new("sync_poll")
    done = a.new("sync_done")
    a(f"""
    s_cmp_lg_u32 s{S_WAVE}, 0
    s_cbranch_scc1 {skip}
    v_mov_b32 v{V_SY1}, 0
    s_mov_b32 s{S_T5}, 0
    """)
    a.label(poll)
    a(f"""
    buffer_load_dword v{V_SY0}, v{V_SY1}, {sr(SRD_DBG, 4)}, 0 offen offset:{cnt_off} sc1
    s_add_u32 s{S_T5}, s{S_T5}, 1
    s_waitcnt vmcnt(0)
    v_readfirstlane_b32 s{S_T4}, v{V_SY0}
    s_cmp_ge_u32 s{S_T5}, 0x40000
    s_cbranch_scc1 {done}
    s_cmp_ge_u32 s{S_T4}, {target}
    s_cbranch_scc1 {done}
    s_sleep 1
    s_branch {poll}
    """)
    a.label(done)
    a.label(skip)
    a("s_barrier")


A_C = 32


def attnA_preload(a):
    a(f"""
    s_lshr_b32 s{S_B}, s2, 5
    s_and_b32 s{S_Q}, s2, 31
    s_lshl_b32 s{S_T0}, s{S_B}, 23
    s_lshl_b32 s{S_T1}, s{S_Q}, 18
    s_add_u32 s{S_OFF}, s{S_T0}, s{S_T1}
    """)
    make_srd(a, SRD4, P_CKV, S_OFF, 256 * 1024)
    a(f"""
    v_and_b32 v{V_T0}, 7, v{V_LANE}
    v_lshrrev_b32 v{V_T1}, 3, v{V_LANE}
    v_lshlrev_b32 v{V_T2}, 10, v{V_T1}
    v_lshlrev_b32 v{V_T3}, 4, v{V_T0}
    v_add_u32 v{V_T2}, v{V_T2}, v{V_T3}
    s_lshl_b32 s{S_T0}, s{S_WAVE}, 7
    v_add_u32 v31, s{S_T0}, v{V_T2}
    s_mov_b32 s{S_T0}, 0
    """)
    for t in range(8):
        for kk in range(4):
            a(f"buffer_load_dwordx4 {vr(A_C + 16 * t + 4 * kk, 4)}, v31, {sr(SRD4, 4)}, s{S_T0} offen nt")
            if not (t == 7 and kk == 3):
                a(f"s_add_u32 s{S_T0}, s{S_T0}, 8192")
    return 32


def stage_prepA(a):
    a(f"""
    s_lshr_b32 s{S_H}, s2, 1
    s_lshl_b32 s{S_OFF}, s{S_H}, 8
    """)
    make_srd(a, SRD0, P_AX, None, 2048)
    make_srd(a, SRD1, P_AWQ, S_OFF, 0)
    a(f"s_sub_u32 s{SRD1 + 2}, {512 * 8192}, s{S_OFF}")
    make_srd(a, SRD2, P_WUK, S_OFF, 0)
    a(f"s_sub_u32 s{SRD2 + 2}, {512 * 8192}, s{S_OFF}")
    make_srd_imm(a, SRD3, P_WS, WS_QP, 65536)
    wbuf = [160 + 4 * i for i in range(16)]
    ubuf = [224 + 4 * i for i in range(8)]
    QF = 160
    ACC = 176

    def extra():
        a(f"""
        v_lshlrev_b32 v30, 13, v{V_L15}
        v_lshlrev_b32 v{V_T2}, 4, v{V_G}
        v_add_u32 v30, v30, v{V_T2}
        s_and_b32 s{S_T1}, s2, 1
        s_lshl_b32 s{S_T1}, s{S_T1}, 21
        s_lshl_b32 s{S_T2}, s{S_WAVE}, 18
        s_add_u32 s{S_T1}, s{S_T1}, s{S_T2}
        s_add_u32 s{S_T2}, s{S_T1}, {16 * 8192}
        """)
        for t in range(2):
            for j in range(4):
                a(f"buffer_load_dwordx4 {vr(ubuf[t * 4 + j], 4)}, v30, {sr(SRD2, 4)}, s{S_T1 + t} offen offset:{64 * j}")
        return 8

    gemv512_phase(a, SRD1, ('global', SRD0), wbuf, 12, 20, 24, issue_extra=extra)
    a(f"""
    v_and_b32 v{V_T0}, 1, v{V_L15}
    v_lshlrev_b32 v{V_T0}, 8, v{V_T0}
    v_lshlrev_b32 v{V_T1}, 4, v{V_G}
    v_add_u32 v{V_T0}, v{V_T0}, v{V_T1}
    """)
    for j in range(4):
        a(f"ds_read_b128 {vr(QF + 4 * j, 4)}, v{V_T0} offset:{L_BF2 + 64 * j}")
    a(f"""
    v_lshlrev_b32 v{V_T0}, 15, v{V_L15}
    v_lshlrev_b32 v{V_T2}, 3, v{V_G}
    v_add_u32 v{V_T0}, v{V_T0}, v{V_T2}
    s_lshl_b32 s{S_T0}, s2, 9
    s_lshl_b32 s{S_T1}, s{S_WAVE}, 6
    s_add_u32 s{S_T0}, s{S_T0}, s{S_T1}
    v_add_u32 v{V_T0}, s{S_T0}, v{V_T0}
    s_waitcnt lgkmcnt(0) vmcnt(0)
    """)
    for t in range(2):
        acc = ACC + 4 * t
        for j in range(4):
            c = "0" if j == 0 else vr(acc, 4)
            a(f"v_mfma_f32_16x16x32_bf16 {vr(acc, 4)}, {vr(ubuf[t * 4 + j], 4)}, {vr(QF + 4 * j, 4)}, {c}")
    a("s_nop 7\ns_nop 3")
    a(f"v_cmp_gt_u32 vcc, 2, v{V_L15}\ns_and_saveexec_b64 {sr(S_SAVE, 2)}, vcc")
    for t in range(2):
        acc = ACC + 4 * t
        a(f"""
        v_cvt_pk_bf16_f32 v{16 + 2 * t}, v{acc}, v{acc + 1}
        v_cvt_pk_bf16_f32 v{17 + 2 * t}, v{acc + 2}, v{acc + 3}
        buffer_store_dwordx2 {vr(16 + 2 * t, 2)}, v{V_T0}, {sr(SRD3, 4)}, 0 offen offset:{32 * t} sc1
        """)
    a(f"s_mov_b64 exec, {sr(S_SAVE, 2)}")


def gen_B_role(a):
    DEPTH = 3
    KBUF = [64 + 32 * i for i in range(DEPTH)]
    VBUF = [80 + 32 * i for i in range(DEPTH)]
    WO = [160 + 4 * i for i in range(16)]
    QF = 32
    AT = 48
    V_S = 12
    V_O = 16
    V_PK = 20
    V_L, V_TM, V_M, V_NMC = 24, 25, 26, 27
    V_WOFF, V_OFFK, V_OFFV = 29, 30, 31
    S_CNT = 77
    NT = " nt"
    WAITN = 8 * DEPTH - 4
    stamp(a, 0)
    dstamp(a, 8, True)
    a(f"""
    s_sub_u32 s{S_T0}, s2, {NA_WG}
    s_and_b32 s{S_T1}, s{S_T0}, 7
    s_lshr_b32 s{S_T2}, s{S_T0}, 3
    s_and_b32 s{S_T3}, s{S_T2}, 3
    s_lshl_b32 s{S_T3}, s{S_T3}, 3
    s_add_u32 s{S_H}, s{S_T1}, s{S_T3}
    s_lshr_b32 s{S_T2}, s{S_T2}, 2
    s_cmp_ge_u32 s{S_T2}, 3
    s_cselect_b32 s{S_B}, 1, 0
    s_mul_i32 s{S_T3}, s{S_B}, 3
    s_sub_u32 s{S_Q}, s{S_T2}, s{S_T3}
    """)
    a(f"""
    s_lshl_b32 s{S_T0}, s{S_B}, 5
    s_add_u32 s{S_T0}, s{S_T0}, s{S_H}
    s_lshl_b32 s{S_T0}, s{S_T0}, 21
    s_mul_i32 s{S_T1}, s{S_Q}, {171 * 4096}
    s_add_u32 s{S_T0}, s{S_T0}, s{S_T1}
    s_lshl_b32 s{S_T1}, s{S_WAVE}, 12
    s_add_u32 s{S_OFF}, s{S_T0}, s{S_T1}
    s_cmp_eq_u32 s{S_Q}, 2
    s_cselect_b32 s{S_T2}, 1, 0
    s_sub_u32 s{S_T2}, 171, s{S_T2}
    s_sub_u32 s{S_T2}, s{S_T2}, s{S_WAVE}
    s_add_u32 s{S_CNT}, s{S_T2}, 7
    s_lshr_b32 s{S_CNT}, s{S_CNT}, 3
    """)
    make_srd(a, SRD0, P_BK, S_OFF, 0)
    make_srd(a, SRD1, P_BV, S_OFF, 0)
    a(f"s_lshl_b32 s{SRD0 + 2}, s{S_T2}, 12\ns_lshl_b32 s{SRD1 + 2}, s{S_T2}, 12")
    make_srd(a, SRD2, P_BX, None, 2048)
    a(f"s_lshl_b32 s{S_OFF}, s{S_H}, 8")
    make_srd(a, SRD3, P_BWQ, S_OFF, 0)
    a(f"s_sub_u32 s{SRD3 + 2}, {512 * 8192}, s{S_OFF}")
    a(f"s_lshl_b32 s{S_OFF}, s{S_H}, 17")
    make_srd(a, SRD4, P_BWO, S_OFF, 131072)
    a(f"""
    v_lshlrev_b32 v{V_OFFK}, 8, v{V_L15}
    v_lshlrev_b32 v{V_T0}, 4, v{V_G}
    v_add_u32 v{V_OFFK}, v{V_OFFK}, v{V_T0}
    v_lshlrev_b32 v{V_OFFV}, 10, v{V_G}
    v_lshlrev_b32 v{V_T0}, 4, v{V_L15}
    v_add_u32 v{V_OFFV}, v{V_OFFV}, v{V_T0}
    """)
    proj_addr(a, V_WOFF)

    def loadK(buf, soff):
        for j in range(4):
            a(f"buffer_load_dwordx4 {vr(buf + 4 * j, 4)}, v{V_OFFV}, {sr(SRD0, 4)}, {soff} offen offset:{256 * j}{NT}")

    def loadV(buf, soff):
        for i in range(4):
            a(f"buffer_load_dwordx4 {vr(buf + 4 * i, 4)}, v{V_OFFV}, {sr(SRD1, 4)}, {soff} offen offset:{256 * i}{NT}")

    def extra():
        a(f"s_mov_b32 s{S_LOOP}, 0")
        for d in range(DEPTH):
            loadK(KBUF[d], f"s{S_LOOP}")
            loadV(VBUF[d], f"s{S_LOOP}")
            a(f"s_add_u32 s{S_LOOP}, s{S_LOOP}, 32768")
        return 8 * DEPTH

    gemv512_phase(a, SRD3, ('global', SRD2), WO, 12, 20, 24, issue_extra=extra)
    for i in range(16):
        proj_load(a, SRD4, V_WOFF, WO, i)
    a(f"""
    v_lshlrev_b32 v{V_T0}, 4, v{V_L15}
    s_lshl_b32 s{S_T0}, s{S_B}, 8
    v_add_u32 v{V_T0}, s{S_T0}, v{V_T0}
    ds_read_b128 {vr(QF, 4)}, v{V_T0} offset:{L_BF2}
    """)
    a(f"""
    v_mov_b32 v{V_L}, 0
    v_mov_b32 v{V_M}, 0xff800000
    v_mov_b32 v{V_NMC}, 0
    v_mov_b32 v{V_O}, 0
    v_mov_b32 v{V_O + 1}, 0
    v_mov_b32 v{V_O + 2}, 0
    v_mov_b32 v{V_O + 3}, 0
    s_waitcnt lgkmcnt(0)
    """)
    rare_blocks = []
    stamp(a, 1)
    dstamp(a, 11)

    def tile(K, V):
        rare = a.new("brare")
        back = a.new("bback")
        a(f"s_waitcnt vmcnt({WAITN})")
        for j in range(4):
            for i in range(4):
                c = "0" if j == 0 else f"v{V_S + i}"
                a(f"v_dot2_f32_bf16 v{V_S + i}, v{K + 4 * i + j}, v{QF + j}, {c}")
        loadK(K, f"s{S_LOOP}")
        for r in (8, 4, 2, 1):
            for i in range(4):
                a(f"v_add_f32_dpp v{V_S + i}, v{V_S + i}, v{V_S + i} row_ror:{r} row_mask:0xf bank_mask:0xf")
        a(f"""
        v_max3_f32 v{V_TM}, v{V_S}, v{V_S + 1}, v{V_S + 2}
        v_max_f32 v{V_TM}, v{V_TM}, v{V_S + 3}
        v_cmp_gt_f32 vcc, v{V_TM}, v{V_M}
        s_cbranch_vccnz {rare}
        """)
        a.label(back)
        for i in range(4):
            a(f"v_fma_f32 v{V_S + i}, v{V_S + i}, s{S_C}, v{V_NMC}")
        for i in range(4):
            a(f"v_exp_f32 v{V_S + i}, v{V_S + i}")
        a("s_nop 0")
        for i in range(4):
            a(f"v_cvt_pk_bf16_f32 v{V_PK + i}, v{V_S + i}, v{V_S + i}")
        a(f"""
        v_add_f32 v{V_S}, v{V_S}, v{V_S + 1}
        v_add_f32 v{V_S + 2}, v{V_S + 2}, v{V_S + 3}
        v_add_f32 v{V_L}, v{V_L}, v{V_S}
        v_add_f32 v{V_L}, v{V_L}, v{V_S + 2}
        """)
        for i in range(4):
            for j in range(4):
                a(f"v_and_b32 v{AT + 4 * i + j}, v{V_PK + i}, v{V_MASK + j}")
        a(f"s_waitcnt vmcnt({WAITN})")
        for i in range(4):
            a(f"v_mfma_f32_16x16x32_bf16 {vr(V_O, 4)}, {vr(AT + 4 * i, 4)}, {vr(V + 4 * i, 4)}, {vr(V_O, 4)}")
        loadV(V, f"s{S_LOOP}")
        a(f"s_add_u32 s{S_LOOP}, s{S_LOOP}, 32768")
        a(f"s_sub_u32 s{S_CNT}, s{S_CNT}, 1\ns_cmp_eq_u32 s{S_CNT}, 0")
        rare_blocks.append((rare, back))

    loop = a.new("bloop")
    done = a.new("bdone")
    a.label(loop)
    for d in range(DEPTH):
        tile(KBUF[d], VBUF[d])
        if d != DEPTH - 1:
            a(f"s_cbranch_scc1 {done}")
        else:
            a(f"s_cbranch_scc0 {loop}")
    a(f"s_branch {done}")
    for rare, back in rare_blocks:
        a.label(rare)
        a(f"""
        v_readlane_b32 s{S_R2}, v{V_TM}, 0
        v_readlane_b32 s{S_R3}, v{V_TM}, 16
        v_readlane_b32 s{S_T4}, v{V_TM}, 32
        v_readlane_b32 s{S_T5}, v{V_TM}, 48
        s_nop 1
        v_max_f32 v{V_TM}, s{S_R2}, v{V_M}
        v_max_f32 v{V_TM}, s{S_R3}, v{V_TM}
        v_max_f32 v{V_TM}, s{S_T4}, v{V_TM}
        v_max_f32 v{V_TM}, s{S_T5}, v{V_TM}
        v_sub_f32 v{V_T0}, v{V_M}, v{V_TM}
        v_mul_f32 v{V_T0}, s{S_C}, v{V_T0}
        v_exp_f32 v{V_T0}, v{V_T0}
        v_mov_b32 v{V_M}, v{V_TM}
        v_mul_f32 v{V_NMC}, s{S_C}, v{V_TM}
        v_sub_f32 v{V_NMC}, 0, v{V_NMC}
        v_mul_f32 v{V_L}, v{V_L}, v{V_T0}
        v_mul_f32 v{V_O}, v{V_O}, v{V_T0}
        v_mul_f32 v{V_O + 1}, v{V_O + 1}, v{V_T0}
        v_mul_f32 v{V_O + 2}, v{V_O + 2}, v{V_T0}
        v_mul_f32 v{V_O + 3}, v{V_O + 3}, v{V_T0}
        s_branch {back}
        """)
    a.label(done)
    a(f"""
    s_nop 7
    v_readlane_b32 s{S_R2}, v{V_L}, 0
    v_readlane_b32 s{S_R3}, v{V_L}, 16
    v_readlane_b32 s{S_T4}, v{V_L}, 32
    v_readlane_b32 s{S_T5}, v{V_L}, 48
    s_nop 1
    v_mov_b32 v{V_L}, s{S_R2}
    v_add_f32 v{V_L}, s{S_R3}, v{V_L}
    v_add_f32 v{V_L}, s{S_T4}, v{V_L}
    v_add_f32 v{V_NMC}, s{S_T5}, v{V_L}
    v_lshlrev_b32 v{V_T0}, 5, v{V_L15}
    v_lshlrev_b32 v{V_T1}, 4, v{V_G}
    v_add_u32 v{V_T0}, v{V_T0}, v{V_T1}
    s_lshl_b32 s{S_T0}, s{S_WAVE}, 9
    v_add_u32 v{V_T0}, s{S_T0}, v{V_T0}
    s_lshl_b32 s{S_T0}, s{S_WAVE}, 3
    v_mov_b32 v{V_T1}, s{S_T0}
    v_cmp_gt_u32 vcc, 32, v{V_LANE}
    s_and_saveexec_b64 {sr(S_SAVE, 2)}, vcc
    ds_write_b128 v{V_T0}, {vr(V_O, 4)} offset:{L_PART}
    ds_write_b64 v{V_T1}, {vr(V_M, 2)} offset:{L_STAT}
    s_mov_b64 exec, {sr(S_SAVE, 2)}
    s_waitcnt lgkmcnt(0)
    s_barrier
    """)
    ST = 32
    a(f"v_mov_b32 v{V_T0}, 0")
    for k in range(4):
        a(f"ds_read_b128 {vr(ST + 4 * k, 4)}, v{V_T0} offset:{L_STAT + 16 * k}")
    a(f"""
    v_and_b32 v{V_T1}, 127, v{V_TID}
    v_lshlrev_b32 v{V_T2}, 2, v{V_T1}
    """)
    for w in range(8):
        a(f"ds_read_b32 v{48 + w}, v{V_T2} offset:{L_PART + 512 * w}")
    a("s_waitcnt lgkmcnt(0)")
    MG = 56
    a(f"""
    v_max3_f32 v{MG}, v{ST}, v{ST + 2}, v{ST + 4}
    v_max3_f32 v{MG}, v{MG}, v{ST + 6}, v{ST + 8}
    v_max3_f32 v{MG}, v{MG}, v{ST + 10}, v{ST + 12}
    v_max_f32 v{MG}, v{MG}, v{ST + 14}
    """)
    for w in range(8):
        a(f"""
        v_sub_f32 v{ST + 2 * w}, v{ST + 2 * w}, v{MG}
        v_mul_f32 v{ST + 2 * w}, s{S_C}, v{ST + 2 * w}
        v_exp_f32 v{ST + 2 * w}, v{ST + 2 * w}
        """)
    LG = 57
    a(f"s_nop 0\nv_mul_f32 v{LG}, v{ST}, v{ST + 1}\nv_mul_f32 v58, v{ST}, v48")
    for w in range(1, 8):
        a(f"v_fmac_f32 v{LG}, v{ST + 2 * w}, v{ST + 2 * w + 1}")
        a(f"v_fmac_f32 v58, v{ST + 2 * w}, v{48 + w}")
    a(f"""
    v_cvt_pk_bf16_f32 v58, v58, v58
    v_lshlrev_b32 v{V_T1}, 1, v{V_T1}
    ds_write_b16 v{V_T1}, v58 offset:{L_BF}
    s_waitcnt lgkmcnt(0) vmcnt(0)
    s_barrier
    """)
    stamp(a, 2)
    proj_compute(a, L_BF, False, WO, 12, 20, 24, waits=False)
    stamp(a, 3)
    dstamp(a, 9)
    dstamp(a, 12, True)
    a(f"""
    s_lshl_b32 s{S_T0}, s{S_B}, 5
    s_add_u32 s{S_T0}, s{S_T0}, s{S_H}
    s_lshl_b32 s{S_T0}, s{S_T0}, 2
    s_add_u32 s{S_T0}, s{S_T0}, s{S_Q}
    s_lshl_b32 s{S_OFF}, s{S_T0}, 11
    s_add_u32 s{S_OFF}, s{S_OFF}, {WS_YB}
    """)
    make_srd(a, SRD3, P_WS, S_OFF, 2048)
    a(f"""
    s_lshl_b32 s{S_OFF}, s{S_T0}, 3
    s_add_u32 s{S_OFF}, s{S_OFF}, {WS_BSTAT}
    """)
    make_srd(a, SRD4, P_WS, S_OFF, 8)
    a(f"""
    v_lshlrev_b32 v{V_T0}, 2, v{V_TID}
    ds_read_b32 v{V_T1}, v{V_T0} offset:{L_YP}
    ds_read_b32 v{V_T2}, v{V_T0} offset:{L_YP + 4096}
    s_waitcnt lgkmcnt(0)
    v_add_f32 v{V_T1}, v{V_T1}, v{V_T2}
    buffer_store_dword v{V_T1}, v{V_T0}, {sr(SRD3, 4)}, 0 offen sc1
    v_lshlrev_b32 v{V_T0}, 3, v{V_TID}
    buffer_store_dwordx2 {vr(MG, 2)}, v{V_T0}, {sr(SRD4, 4)}, 0 offen sc1
    """)
    sync_arrive(a, 64)
    a("s_endpgm")


LA_X = 0
LA_S = 65536
LA_T = 73728
LA_ROW = 144
LA_TILE = 32 * LA_ROW
LA_END = LA_T + 8 * 2 * LA_TILE


def stage_attnA(a):
    QF = 160
    ACC = 176
    V_S = 208
    TX = 240
    V_P = 8
    V_WT, V_XW, V_XR, V_TR, V_M = 3, 4, 5, 6, 7
    V_AF = 24
    V_L, V_NMC, V_TM, V_RS = 252, 253, 254, 255
    a(f"s_lshl_b32 s{S_OFF}, s{S_B}, 15")
    make_srd(a, SRD1, P_WS, S_OFF, 32768)
    a(f"""
    v_and_b32 v{V_T0}, 31, v{V_LANE}
    v_lshrrev_b32 v{V_T1}, 5, v{V_LANE}
    v_lshlrev_b32 v{V_T3}, 4, v{V_T1}
    v_lshlrev_b32 v{V_T2}, 10, v{V_T0}
    v_add_u32 v{V_T2}, v{V_T2}, v{V_T3}
    s_lshl_b32 s{S_T0}, s{S_WAVE}, 7
    v_add_u32 v{V_T2}, s{S_T0}, v{V_T2}
    """)
    for kk in range(4):
        a(f"buffer_load_dwordx4 {vr(QF + 4 * kk, 4)}, v{V_T2}, {sr(SRD1, 4)}, 0 offen offset:{32 * kk} sc1")
    a(f"""
    s_mul_i32 s{S_T0}, s{S_WAVE}, {2 * LA_TILE}
    s_add_u32 s{S_T0}, s{S_T0}, {LA_T}
    v_mul_u32_u24 v{V_AF}, {LA_ROW}, v{V_T0}
    v_add_u32 v{V_AF}, v{V_AF}, v{V_T3}
    v_add_u32 v{V_AF}, s{S_T0}, v{V_AF}
    v_lshrrev_b32 v13, 3, v{V_LANE}
    v_mul_u32_u24 v13, {LA_ROW}, v13
    v_and_b32 v14, 7, v{V_LANE}
    v_lshlrev_b32 v14, 4, v14
    v_add_u32 v13, v13, v14
    v_add_u32 v13, s{S_T0}, v13
    v_lshlrev_b32 v14, 4, v{V_LANE}
    s_lshl_b32 s{S_T1}, s{S_WAVE}, 13
    v_add_u32 v15, s{S_T1}, v14
    s_lshr_b32 s{S_T1}, s{S_WAVE}, 1
    s_lshl_b32 s{S_T1}, s{S_T1}, 10
    s_and_b32 s{S_T2}, s{S_WAVE}, 1
    s_lshl_b32 s{S_T2}, s{S_T2}, 3
    s_add_u32 s{S_T1}, s{S_T1}, s{S_T2}
    v_add_u32 v{V_RS}, s{S_T1}, v14
    """)
    a(f"""
    v_lshrrev_b32 v{V_T0}, 1, v{V_G}
    v_lshlrev_b32 v{V_T0}, 2, v{V_T0}
    v_lshrrev_b32 v{V_T1}, 2, v{V_L15}
    v_add_u32 v{V_T0}, v{V_T0}, v{V_T1}
    v_mul_u32_u24 v{V_T0}, {LA_ROW}, v{V_T0}
    v_and_b32 v{V_T1}, 1, v{V_G}
    v_lshlrev_b32 v{V_T1}, 5, v{V_T1}
    v_add_u32 v{V_T0}, v{V_T0}, v{V_T1}
    v_and_b32 v{V_T1}, 3, v{V_L15}
    v_lshlrev_b32 v{V_T1}, 3, v{V_T1}
    v_add_u32 v{V_T0}, v{V_T0}, v{V_T1}
    v_add_u32 v{V_TR}, s{S_T0}, v{V_T0}
    v_mov_b32 v{V_WT}, v13
    v_add_u32 v{V_XR}, {LA_S}, v14
    v_add_u32 v25, {LA_S}, v{V_RS}
    v_mov_b32 v{V_XW}, v15
    v_mov_b32 v{V_M}, 0xff800000
    v_mov_b32 v{V_L}, 0
    v_mov_b32 v{V_NMC}, 0
    """)
    for i in range(32):
        a(f"v_mov_b32 v{ACC + i}, 0")
    a("s_waitcnt vmcnt(0)")
    stamp(a, 6)
    rare_blocks = []

    def rnd(C):
        rare = a.new("arare")
        back = a.new("aback")
        for tl in range(2):
            for kk in range(4):
                a(f"ds_write_b128 v{V_WT}, {vr(C + 16 * tl + 4 * kk, 4)} offset:{tl * LA_TILE + kk * 8 * LA_ROW}")
        a("s_waitcnt lgkmcnt(0)")
        for tl in range(2):
            for kk in range(4):
                a(f"ds_read_b128 {vr(V_P + 4 * kk, 4)}, v{V_AF} offset:{tl * LA_TILE + 32 * kk}")
            for kk in range(4):
                a(f"s_waitcnt lgkmcnt({3 - kk})")
                c = "0" if kk == 0 else vr(V_S + 16 * tl, 16)
                a(f"v_mfma_f32_32x32x16_bf16 {vr(V_S + 16 * tl, 16)}, {vr(V_P + 4 * kk, 4)}, {vr(QF + 4 * kk, 4)}, {c}")
        a("s_nop 7")
        for q in range(4):
            a(f"ds_write_b128 v{V_XW}, {vr(V_S + 4 * q, 4)} offset:{LA_X + q * 1024}")
        a("s_nop 3")
        for q in range(4):
            a(f"ds_write_b128 v{V_XW}, {vr(V_S + 16 + 4 * q, 4)} offset:{LA_X + 4096 + q * 1024}")
        a("s_waitcnt lgkmcnt(0)")
        a("s_barrier")
        for tl in range(2):
            for w in range(8):
                a(f"ds_read_b64 {vr(V_S + 16 * tl + 2 * w, 2)}, v{V_RS} offset:{LA_X + w * 8192 + tl * 4096}")
        for tl in range(2):
            for w in range(1, 8):
                a(f"s_waitcnt lgkmcnt({15 - 8 * tl - w})")
                a(f"v_add_f32 v{V_S + 16 * tl}, v{V_S + 16 * tl}, v{V_S + 16 * tl + 2 * w}")
                a(f"v_add_f32 v{V_S + 16 * tl + 1}, v{V_S + 16 * tl + 1}, v{V_S + 16 * tl + 2 * w + 1}")
        a(f"""
        ds_write_b64 v25, {vr(V_S, 2)}
        ds_write_b64 v25, {vr(V_S + 16, 2)} offset:4096
        s_waitcnt lgkmcnt(0)
        s_barrier
        """)
        for q in range(8):
            a(f"ds_read_b128 {vr(V_S + 4 * q, 4)}, v{V_XR} offset:{q * 1024}")
        units = [(tl, ct, kh) for tl in range(2) for kh in range(2) for ct in range(2)]

        def trread(u):
            tl, ct, kh = units[u]
            t = TX + 4 * (u % 3)
            base = tl * LA_TILE + (kh * 16) * LA_ROW + ct * 64
            a(f"ds_read_b64_tr_b16 {vr(t, 2)}, v{V_TR} offset:{base}")
            a(f"ds_read_b64_tr_b16 {vr(t + 2, 2)}, v{V_TR} offset:{base + 8 * LA_ROW}")
        for u in range(3):
            trread(u)
        a("s_waitcnt lgkmcnt(6)")
        a(f"v_max3_f32 v{V_TM}, v{V_S}, v{V_S + 1}, v{V_S + 2}")
        for k in range(3, 31, 2):
            a(f"v_max3_f32 v{V_TM}, v{V_TM}, v{V_S + k}, v{V_S + k + 1}")
        a(f"""
        v_max_f32 v{V_TM}, v{V_TM}, v{V_S + 31}
        v_cmp_gt_f32 vcc, v{V_TM}, v{V_M}
        s_cbranch_vccnz {rare}
        """)
        a.label(back)
        for i in range(32):
            a(f"v_fma_f32 v{V_S + i}, v{V_S + i}, s{S_C}, v{V_NMC}")
        for i in range(32):
            a(f"v_exp_f32 v{V_S + i}, v{V_S + i}")
        a("s_nop 0")
        for i in range(16):
            a(f"v_cvt_pk_bf16_f32 v{V_P + i}, v{V_S + 2 * i}, v{V_S + 2 * i + 1}")
        a("s_nop 1")
        adds = []
        for st in (1, 2, 4, 8, 16):
            for i in range(0, 32, 2 * st):
                adds.append(f"v_add_f32 v{V_S + i}, v{V_S + i}, v{V_S + i + st}")
        adds.append(f"v_add_f32 v{V_L}, v{V_L}, v{V_S}")
        for u in range(8):
            tl, ct, kh = units[u]
            t = TX + 4 * (u % 3)
            a(f"s_waitcnt lgkmcnt({2 * min(2, 7 - u)})")
            a(f"v_mfma_f32_32x32x16_bf16 {vr(ACC + 16 * ct, 16)}, {vr(t, 4)}, {vr(V_P + 8 * tl + 4 * kh, 4)}, {vr(ACC + 16 * ct, 16)}")
            if u + 3 < 8:
                trread(u + 3)
            for x in adds[4 * u: 4 * u + 4]:
                a(x)
        rare_blocks.append((rare, back))

    for r in range(4):
        rnd(A_C + 32 * r)
        if r == 0:
            stamp(a, 7)
    done = a.new("adone")
    a(f"s_branch {done}")
    for rare, back in rare_blocks:
        a.label(rare)
        a(f"""
        v_mov_b32 v{V_P}, v{V_TM}
        v_mov_b32 v{V_P + 1}, v{V_TM}
        s_nop 1
        v_permlane32_swap_b32 v{V_P}, v{V_P + 1}
        s_nop 1
        v_max3_f32 v{V_TM}, v{V_P}, v{V_P + 1}, v{V_M}
        v_sub_f32 v{V_P}, v{V_M}, v{V_TM}
        v_mul_f32 v{V_P}, s{S_C}, v{V_P}
        v_exp_f32 v{V_P}, v{V_P}
        v_mov_b32 v{V_M}, v{V_TM}
        v_mul_f32 v{V_NMC}, s{S_C}, v{V_TM}
        v_sub_f32 v{V_NMC}, 0, v{V_NMC}
        v_mul_f32 v{V_L}, v{V_L}, v{V_P}
        """)
        for i in range(32):
            a(f"v_mul_f32 v{ACC + i}, v{ACC + i}, v{V_P}")
        a(f"s_branch {back}")
    a.label(done)
    a(f"""
    s_lshl_b32 s{S_T0}, s2, 16
    s_add_u32 s{S_OFF}, s{S_T0}, {WS_APART}
    """)
    make_srd(a, SRD2, P_WS, S_OFF, 65536)
    a(f"""
    s_lshl_b32 s{S_T0}, s{S_B}, 13
    s_lshl_b32 s{S_T1}, s{S_Q}, 3
    s_add_u32 s{S_T0}, s{S_T0}, s{S_T1}
    s_add_u32 s{S_OFF}, s{S_T0}, {WS_ASTAT}
    """)
    make_srd(a, SRD3, P_WS, S_OFF, 8192 - 248)
    a(f"""
    s_mul_i32 s{S_T0}, s{S_WAVE}, {2 * LA_TILE}
    s_add_u32 s{S_T0}, s{S_T0}, {LA_T}
    v_and_b32 v{TX}, 31, v{V_LANE}
    v_lshrrev_b32 v{TX + 1}, 5, v{V_LANE}
    v_mul_u32_u24 v{TX + 2}, 272, v{TX}
    v_lshlrev_b32 v{TX + 1}, 4, v{TX + 1}
    v_add_u32 v{TX + 2}, v{TX + 2}, v{TX + 1}
    v_add_u32 v{TX + 2}, s{S_T0}, v{TX + 2}
    v_lshrrev_b32 v{TX + 3}, 4, v{V_LANE}
    v_and_b32 v{TX + 4}, 15, v{V_LANE}
    v_lshlrev_b32 v{TX + 4}, 4, v{TX + 4}
    v_mul_u32_u24 v{TX + 5}, 272, v{TX + 3}
    v_add_u32 v{TX + 5}, v{TX + 5}, v{TX + 4}
    v_add_u32 v{TX + 5}, s{S_T0}, v{TX + 5}
    v_lshlrev_b32 v{TX + 6}, 11, v{TX + 3}
    v_add_u32 v{TX + 6}, v{TX + 6}, v{TX + 4}
    s_lshl_b32 s{S_T0}, s{S_WAVE}, 8
    v_add_u32 v{TX + 6}, s{S_T0}, v{TX + 6}
    s_nop 7
    s_nop 3
    """)
    for ct in range(2):
        for q4 in range(4):
            a(f"ds_write_b128 v{TX + 2}, {vr(ACC + 16 * ct + 4 * q4, 4)} offset:{ct * 128 + q4 * 32}")
    a("s_waitcnt lgkmcnt(0)")
    for j in range(8):
        a(f"ds_read_b128 {vr(ACC + 4 * j, 4)}, v{TX + 5} offset:{j * 4 * 272}")
    a(f"s_mov_b32 s{S_T0}, 0")
    for j in range(8):
        a(f"s_waitcnt lgkmcnt({7 - j})")
        a(f"buffer_store_dwordx4 {vr(ACC + 4 * j, 4)}, v{TX + 6}, {sr(SRD2, 4)}, s{S_T0} offen sc1")
        if j != 7:
            a(f"s_add_u32 s{S_T0}, s{S_T0}, 8192")
    a(f"""
    v_mov_b32 v{TX + 8}, v{V_L}
    v_mov_b32 v{TX + 9}, v{V_L}
    s_nop 1
    v_permlane32_swap_b32 v{TX + 8}, v{TX + 9}
    s_nop 1
    v_add_f32 v{TX + 11}, v{TX + 8}, v{TX + 9}
    v_mov_b32 v{TX + 10}, v{V_M}
    v_lshlrev_b32 v{TX + 3}, 8, v{V_TID}
    buffer_store_dwordx2 {vr(TX + 10, 2)}, v{TX + 3}, {sr(SRD3, 4)}, 0 offen sc1
    """)


F_WUV = [128 + 4 * i for i in range(16)]
F_WO = [192 + 4 * i for i in range(16)]


def finishA_prefetch(a):
    a(f"""
    s_and_b32 s{S_H}, s2, 31
    s_lshr_b32 s{S_B}, s2, 5
    s_lshl_b32 s{S_OFF}, s{S_H}, 8
    """)
    make_srd(a, SRD2, P_WUV, S_OFF, 0)
    a(f"s_sub_u32 s{SRD2 + 2}, {512 * 8192}, s{S_OFF}")
    a(f"s_lshl_b32 s{S_OFF}, s{S_H}, 17")
    make_srd(a, SRD3, P_AWO, S_OFF, 131072)
    gemv512_wloads(a, SRD2, F_WUV)
    proj_addr(a, 31)
    for i in range(16):
        proj_load(a, SRD3, 31, F_WO, i)


def stage_finishA(a):
    a(f"""
    s_lshl_b32 s{S_T0}, s{S_B}, 21
    s_lshl_b32 s{S_T1}, s{S_H}, 11
    s_add_u32 s{S_T0}, s{S_T0}, s{S_T1}
    s_add_u32 s{S_OFF}, s{S_T0}, {WS_APART}
    """)
    make_srd(a, SRD0, P_WS, S_OFF, 31 * 65536 + 2048)
    a(f"""
    s_lshl_b32 s{S_T0}, s{S_B}, 13
    s_lshl_b32 s{S_T1}, s{S_H}, 8
    s_add_u32 s{S_T0}, s{S_T0}, s{S_T1}
    s_add_u32 s{S_OFF}, s{S_T0}, {WS_ASTAT}
    """)
    make_srd(a, SRD1, P_WS, S_OFF, 256)
    a(f"""
    s_lshl_b32 s{S_T0}, s{S_H}, 12
    s_lshl_b32 s{S_T1}, s{S_B}, 11
    s_add_u32 s{S_T0}, s{S_T0}, s{S_T1}
    s_add_u32 s{S_OFF}, s{S_T0}, {WS_YA}
    """)
    make_srd(a, SRD4, P_WS, S_OFF, 2048)
    STAT = 32
    PART = 96
    a(f"""
    v_lshrrev_b32 v{V_T0}, 7, v{V_TID}
    v_and_b32 v{V_T1}, 127, v{V_TID}
    v_lshlrev_b32 v{V_T2}, 19, v{V_T0}
    v_lshlrev_b32 v{V_T3}, 4, v{V_T1}
    v_add_u32 v{V_T2}, v{V_T2}, v{V_T3}
    v_mov_b32 v{V_T3}, 0
    s_mov_b32 s{S_T0}, 0
    """)
    for k in range(16):
        a(f"buffer_load_dwordx4 {vr(STAT + 4 * k, 4)}, v{V_T3}, {sr(SRD1, 4)}, 0 offen offset:{16 * k} sc1")
    for k in range(8):
        a(f"buffer_load_dwordx4 {vr(PART + 4 * k, 4)}, v{V_T2}, {sr(SRD0, 4)}, s{S_T0} offen sc1")
        if k != 7:
            a(f"s_add_u32 s{S_T0}, s{S_T0}, 65536")
    a("s_waitcnt vmcnt(8)")
    MG, LG = 12, 13
    a(f"v_max_f32 v{MG}, v{STAT}, v{STAT + 2}")
    for k in range(2, 32, 2):
        a(f"v_max3_f32 v{MG}, v{MG}, v{STAT + 2 * k}, v{STAT + 2 * k + 2}")
    for k in range(32):
        a(f"""
        v_sub_f32 v{STAT + 2 * k}, v{STAT + 2 * k}, v{MG}
        v_mul_f32 v{STAT + 2 * k}, s{S_C}, v{STAT + 2 * k}
        v_exp_f32 v{STAT + 2 * k}, v{STAT + 2 * k}
        """)
    a(f"s_nop 0\nv_mul_f32 v{LG}, v{STAT}, v{STAT + 1}")
    for k in range(1, 32):
        a(f"v_fmac_f32 v{LG}, v{STAT + 2 * k}, v{STAT + 2 * k + 1}")
    a(f"v_rcp_f32 v{LG}, v{LG}")
    a(f"s_lshr_b32 s{S_T1}, s{S_WAVE}, 1")
    for g in range(4):
        a(f"s_cmp_eq_u32 s{S_T1}, {g}\ns_cselect_b64 vcc, -1, 0")
        for k in range(8):
            if g == 0:
                a(f"v_mov_b32 v{16 + k}, v{STAT + 2 * k}")
            else:
                a(f"v_cndmask_b32 v{16 + k}, v{16 + k}, v{STAT + 2 * (8 * g + k)}, vcc")
    a("s_waitcnt vmcnt(0)")
    for i in range(4):
        a(f"v_mul_f32 v{24 + i}, v16, v{PART + i}")
    for k in range(1, 8):
        for i in range(4):
            a(f"v_fmac_f32 v{24 + i}, v{16 + k}, v{PART + 4 * k + i}")
    for i in range(4):
        a(f"v_mul_f32 v{24 + i}, v{24 + i}, v{LG}")
    a(f"""
    v_lshlrev_b32 v{V_T0}, 4, v{V_TID}
    ds_write_b128 v{V_T0}, {vr(24, 4)} offset:{L_YP}
    s_waitcnt lgkmcnt(0)
    s_barrier
    v_and_b32 v{V_T1}, 255, v{V_TID}
    v_lshlrev_b32 v{V_T0}, 3, v{V_T1}
    ds_read_b64 {vr(16, 2)}, v{V_T0} offset:{L_YP}
    ds_read_b64 {vr(18, 2)}, v{V_T0} offset:{L_YP + 2048}
    ds_read_b64 {vr(20, 2)}, v{V_T0} offset:{L_YP + 4096}
    ds_read_b64 {vr(22, 2)}, v{V_T0} offset:{L_YP + 6144}
    s_waitcnt lgkmcnt(0)
    v_add_f32 v16, v16, v18
    v_add_f32 v17, v17, v19
    v_add_f32 v20, v20, v22
    v_add_f32 v21, v21, v23
    v_add_f32 v16, v16, v20
    v_add_f32 v17, v17, v21
    v_cvt_pk_bf16_f32 v16, v16, v17
    v_lshlrev_b32 v{V_T0}, 2, v{V_TID}
    ds_write_b32 v{V_T0}, v16 offset:{L_BF}
    s_waitcnt lgkmcnt(0)
    s_barrier
    """)
    gemv512_xload(a, ('lds', L_BF), 16)
    gemv512_compute(a, F_WUV, 16, 24, 28, None)
    proj_compute(a, L_BF2, True, F_WO, 16, 24, 28, waits=False)
    a(f"""
    v_lshlrev_b32 v{V_T0}, 2, v{V_TID}
    ds_read_b32 v12, v{V_T0} offset:{L_YP}
    ds_read_b32 v13, v{V_T0} offset:{L_YP + 4096}
    s_waitcnt lgkmcnt(0)
    v_add_f32 v12, v12, v13
    buffer_store_dword v12, v{V_T0}, {sr(SRD4, 4)}, 0 offen sc1
    """)


def gen_main(a):
    a.raw(".p2align 8")
    a.label(KNAME)
    a(f"s_cmp_ge_u32 s2, {NA_WG + NB_WG}\ns_cbranch_scc1 L_main_end")
    load_kernargs(a)
    lane_setup(a)
    make_masks(a)
    perm_consts(a)
    a("s_waitcnt lgkmcnt(0)")
    make_srd(a, SRD_DBG, P_DBG, None, 256)
    a(f"s_cmp_lt_u32 s2, {NA_WG}\ns_cbranch_scc1 L_main_A")
    if "noB" in EXP:
        a("s_endpgm")
    gen_B_role(a)
    a.label("L_main_A")
    if "noA" in EXP:
        a("s_endpgm")
    stamp(a, 0)
    stage_prepA(a)
    stamp(a, 1)
    sync_arrive(a, 0)
    attnA_preload(a)
    sync_wait(a, 0, NA_WG)
    stamp(a, 2)
    stage_attnA(a)
    stamp(a, 3)
    sync_arrive(a, 128)
    lane_setup(a)
    make_masks(a)
    finishA_prefetch(a)
    sync_wait(a, 128, NA_WG)
    stamp(a, 4)
    stage_finishA(a)
    stamp(a, 5)
    dstamp(a, 10)
    sync_arrive(a, 64)
    a("s_cmp_lt_u32 s2, 32\ns_cbranch_scc1 L_main_end")
    sync_wait(a, 64, NA_WG + NB_WG)
    dstamp(a, 13)
    stage_final(a)
    dstamp(a, 14)
    a.label("L_main_end")
    a("s_endpgm")


def stage_final(a):
    a(f"""
    s_and_b32 s{S_Q}, s2, 7
    s_lshr_b32 s{S_B}, s2, 3
    s_and_b32 s{S_B}, s{S_B}, 1
    """)
    make_srd(a, SRD4, P_OUT, None, 4096)
    ACC = 12
    a("s_cmp_ge_u32 s2, 48\ns_cbranch_scc1 L_final_B")
    make_srd_imm(a, SRD0, P_WS, WS_YA, 32 * 4096)
    a(f"""
    s_lshl_b32 s{S_T0}, s{S_B}, 11
    s_lshl_b32 s{S_T1}, s{S_Q}, 8
    s_add_u32 s{S_T0}, s{S_T0}, s{S_T1}
    s_lshl_b32 s{S_T1}, s{S_WAVE}, 14
    s_add_u32 s{S_T0}, s{S_T0}, s{S_T1}
    v_lshlrev_b32 v{V_T0}, 2, v{V_LANE}
    v_add_u32 v{V_T0}, s{S_T0}, v{V_T0}
    s_mov_b32 s{S_T1}, 4096
    s_mov_b32 s{S_T2}, 8192
    s_mov_b32 s{S_T3}, 12288
    buffer_load_dword v16, v{V_T0}, {sr(SRD0, 4)}, 0 offen sc1
    buffer_load_dword v17, v{V_T0}, {sr(SRD0, 4)}, s{S_T1} offen sc1
    buffer_load_dword v18, v{V_T0}, {sr(SRD0, 4)}, s{S_T2} offen sc1
    buffer_load_dword v19, v{V_T0}, {sr(SRD0, 4)}, s{S_T3} offen sc1
    s_waitcnt vmcnt(0)
    v_add_f32 v16, v16, v17
    v_add_f32 v18, v18, v19
    v_add_f32 v{ACC}, v16, v18
    s_mov_b32 s{S_T5}, 0
    s_branch L_final_red
    """)
    a.label("L_final_B")
    make_srd_imm(a, SRD0, P_WS, WS_YB, 2 * 32 * 4 * 2048)
    make_srd_imm(a, SRD1, P_WS, WS_BSTAT, 2 * 32 * 32)
    a(f"""
    s_lshl_b32 s{S_T0}, s{S_B}, 5
    s_lshl_b32 s{S_T1}, s{S_WAVE}, 2
    s_add_u32 s{S_T0}, s{S_T0}, s{S_T1}
    s_lshl_b32 s{S_T1}, s{S_T0}, 13
    s_lshl_b32 s{S_T2}, s{S_Q}, 8
    s_add_u32 s{S_T1}, s{S_T1}, s{S_T2}
    v_lshlrev_b32 v{V_T0}, 2, v{V_LANE}
    v_add_u32 v{V_T0}, s{S_T1}, v{V_T0}
    s_lshl_b32 s{S_T1}, s{S_T0}, 5
    v_mov_b32 v{V_T1}, s{S_T1}
    """)
    ST = 32
    Y = 64
    for k in range(4):
        a(f"buffer_load_dwordx4 {vr(ST + 8 * k, 4)}, v{V_T1}, {sr(SRD1, 4)}, 0 offen offset:{32 * k} sc1")
        a(f"buffer_load_dwordx4 {vr(ST + 8 * k + 4, 4)}, v{V_T1}, {sr(SRD1, 4)}, 0 offen offset:{32 * k + 16} sc1")
    a(f"s_mov_b32 s{S_T1}, 0")
    for k in range(4):
        for s in range(3):
            a(f"buffer_load_dword v{Y + 4 * k + s}, v{V_T0}, {sr(SRD0, 4)}, s{S_T1} offen sc1")
            if not (k == 3 and s == 2):
                a(f"s_add_u32 s{S_T1}, s{S_T1}, {2048 if s != 2 else 4096}")
    a(f"s_waitcnt vmcnt(0)\nv_mov_b32 v{ACC}, 0")
    for k in range(4):
        b = ST + 8 * k
        a(f"""
        v_max3_f32 v16, v{b}, v{b + 2}, v{b + 4}
        """)
        for s in range(3):
            a(f"""
            v_sub_f32 v{b + 2 * s}, v{b + 2 * s}, v16
            v_mul_f32 v{b + 2 * s}, s{S_C}, v{b + 2 * s}
            v_exp_f32 v{b + 2 * s}, v{b + 2 * s}
            """)
        a(f"s_nop 0\nv_mul_f32 v17, v{b}, v{b + 1}\nv_mul_f32 v18, v{b}, v{Y + 4 * k}")
        for s in range(1, 3):
            a(f"v_fmac_f32 v17, v{b + 2 * s}, v{b + 2 * s + 1}\nv_fmac_f32 v18, v{b + 2 * s}, v{Y + 4 * k + s}")
        a(f"v_rcp_f32 v17, v17\ns_nop 0\nv_fmac_f32 v{ACC}, v18, v17")
    a(f"s_mov_b32 s{S_T5}, 1024")
    a.label("L_final_red")
    a(f"""
    v_lshlrev_b32 v{V_T0}, 2, v{V_TID}
    ds_write_b32 v{V_T0}, v{ACC}
    s_waitcnt lgkmcnt(0)
    s_barrier
    s_cmp_lg_u32 s{S_WAVE}, 0
    s_cbranch_scc1 L_final_end
    """)
    for w in range(8):
        a(f"ds_read_b32 v{16 + w}, v{V_T0} offset:{256 * w}")
    a("s_waitcnt lgkmcnt(0)")
    for w in range(1, 8):
        a(f"v_add_f32 v16, v16, v{16 + w}")
    a(f"""
    v_cvt_pk_bf16_f32 v16, v16, v16
    s_lshl_b32 s{S_T0}, s{S_B}, 11
    s_lshl_b32 s{S_T1}, s{S_Q}, 7
    s_add_u32 s{S_T0}, s{S_T0}, s{S_T1}
    s_add_u32 s{S_T0}, s{S_T0}, s{S_T5}
    v_lshlrev_b32 v{V_T0}, 1, v{V_LANE}
    buffer_store_short v16, v{V_T0}, {sr(SRD4, 4)}, s{S_T0} offen
    """)
    a.label("L_final_end")


def descriptor(name, vgpr):
    return f"""
.amdhsa_kernel {name}
  .amdhsa_next_free_vgpr {vgpr}
  .amdhsa_next_free_sgpr 100
  .amdhsa_accum_offset {(vgpr + 3) // 4 * 4}
  .amdhsa_group_segment_fixed_size 0
  .amdhsa_kernarg_size 112
  .amdhsa_user_sgpr_count 2
  .amdhsa_user_sgpr_kernarg_segment_ptr 1
  .amdhsa_system_sgpr_workgroup_id_x 1
.end_amdhsa_kernel
"""


def main():
    a = Asm()
    gen_main(a)
    txt = HEADER
    txt += f"; @launch grid=({NA_WG + NB_WG},1,1) block=(512,1,1) lds={LA_END}\n"
    txt += '.amdgcn_target "amdgcn-amd-amdhsa--gfx950"\n.text\n'
    txt += f".globl {KNAME}\n.type {KNAME},@function\n"
    txt += a.text()
    txt += '.section .rodata,"a"\n.p2align 6\n'
    txt += descriptor(KNAME, NVGPR)
    open(OUT, "w").write(txt)
    print("wrote", OUT, len(txt))


if __name__ == "__main__":
    main()
```

```python
import os
import struct
import sys

EXP = os.environ.get("EXP", "")
WPOL = os.environ.get("WPOL", "")

NAME = "concat_heads__compressed_kv_cla__mha_block_cached__decode"
OUT = os.environ.get("OUTS", f"cdna_kernels/{NAME}.s")

HEADER = """; Kernarg layout for this problem (112 bytes, ptrs only, base s[0:1]):
"""


def f32bits(x):
    return struct.unpack("<I", struct.pack("<f", x))[0]


import math
CSCALE = (128 ** -0.5) * math.log2(math.e)

NSA = 32
WS_QP = 0
WS_APART = 0x10000
WS_ASTAT = WS_APART + 2 * NSA * 32 * 512 * 4
WS_YA = WS_ASTAT + 0x10000
WS_YB = WS_YA + 32 * 2 * 512 * 4
WS_BSTAT = WS_YB + 2 * 32 * 4 * 512 * 4
WS_END = WS_BSTAT + 0x10000

NA_WG = 2 * NSA
NB_WG = 192
NVGPR = 256


class Asm:
    def __init__(self):
        self.lines = []
        self.uid = 0

    def __call__(self, s):
        for ln in s.strip("\n").split("\n"):
            ln = ln.strip()
            if ln:
                self.lines.append("    " + ln)

    def label(self, l):
        self.lines.append(l + ":")

    def new(self, base):
        self.uid += 1
        return f"L_{base}_{self.uid}"

    def raw(self, s):
        self.lines.append(s)

    def text(self):
        return "\n".join(self.lines) + "\n"


def vr(a, n):
    return f"v[{a}:{a + n - 1}]"


def sr(a, n):
    return f"s[{a}:{a + n - 1}]"


P_AX, P_CKV, P_AWQ, P_WUK, P_WUV, P_AWO, P_BX, P_BK = 16, 18, 20, 22, 24, 26, 28, 30
P_BV, P_BWQ, P_BWO, P_OUT = 32, 34, 36, 38
P_DBG, P_WS = 40, 42
SRD0, SRD1, SRD2, SRD3, SRD4 = 44, 48, 52, 56, 60
S_WAVE = 64
S_C = 65
S_T0, S_T1, S_T2, S_T3, S_T4, S_T5 = 66, 67, 68, 69, 70, 71
S_H, S_B, S_Q = 72, 73, 74
S_LOOP = 75
S_OFF = 76
S_SAVE = 78
S_R0, S_R1, S_R2, S_R3 = 80, 81, 82, 83

V_TID = 0
V_LANE = 1
V_L15 = 2
V_G = 3
V_MASK = 4
V_T0, V_T1, V_T2, V_T3 = 8, 9, 10, 11


def load_kernargs(a):
    a(f"""
    s_load_dwordx16 {sr(16, 16)}, s[0:1], 0
    s_load_dwordx8 {sr(32, 8)}, s[0:1], 64
    s_load_dwordx4 {sr(40, 4)}, s[0:1], 96
    """)


def lane_setup(a):
    a(f"""
    v_and_b32 v{V_LANE}, 63, v{V_TID}
    v_lshrrev_b32 v{V_T0}, 6, v{V_TID}
    v_and_b32 v{V_L15}, 15, v{V_LANE}
    v_readfirstlane_b32 s{S_WAVE}, v{V_T0}
    v_lshrrev_b32 v{V_G}, 4, v{V_LANE}
    s_mov_b32 s{S_C}, {f32bits(CSCALE):#x}
    """)


def make_masks(a):
    a(f"""
    v_and_b32 v{V_T0}, 7, v{V_LANE}
    v_lshrrev_b32 v{V_T1}, 1, v{V_T0}
    v_and_b32 v{V_T0}, 1, v{V_T0}
    v_lshlrev_b32 v{V_T0}, 4, v{V_T0}
    v_mov_b32 v{V_T2}, 0xffff
    v_lshlrev_b32 v{V_T2}, v{V_T0}, v{V_T2}
    """)
    for j in range(4):
        a(f"""
        v_cmp_eq_u32 vcc, {j}, v{V_T1}
        s_nop 1
        v_cndmask_b32 v{V_MASK + j}, 0, v{V_T2}, vcc
        """)


def make_srd(a, srd, ptr, off_sgpr, nbytes):
    if off_sgpr is None:
        a(f"s_mov_b32 s{srd}, s{ptr}\ns_mov_b32 s{srd + 1}, s{ptr + 1}")
    else:
        a(f"s_add_u32 s{srd}, s{ptr}, s{off_sgpr}\ns_addc_u32 s{srd + 1}, s{ptr + 1}, 0")
    a(f"s_mov_b32 s{srd + 2}, {nbytes:#x}\ns_mov_b32 s{srd + 3}, 0x00020000")


def make_srd_imm(a, srd, ptr, off, nbytes):
    a(f"s_add_u32 s{srd}, s{ptr}, {off:#x}\ns_addc_u32 s{srd + 1}, s{ptr + 1}, 0")
    a(f"s_mov_b32 s{srd + 2}, {nbytes:#x}\ns_mov_b32 s{srd + 3}, 0x00020000")


def delta_mfma(a, xregs, i, data, acc, tmp, first=False):
    sel = S_R0 if (i & 1) == 0 else S_R1
    a(f"v_perm_b32 v{tmp + 4}, v{xregs + (i >> 1)}, v{xregs + (i >> 1)}, s{sel}")
    for j in range(4):
        a(f"v_and_b32 v{tmp + j}, v{tmp + 4}, v{V_MASK + j}")
    a("s_nop 1")
    c = "0" if first else vr(acc, 4)
    a(f"v_mfma_f32_16x16x32_bf16 {vr(acc, 4)}, {vr(tmp, 4)}, {vr(data, 4)}, {c}")


def perm_consts(a):
    a(f"s_mov_b32 s{S_R0}, 0x01000100\ns_mov_b32 s{S_R1}, 0x03020302")


L_PART = 0
L_BF = 8192
L_BF2 = 10240
L_STAT = 11264
L_YP = 12288
L_END_SMALL = 20480


def gemv512_xload(a, xsrc, xregs):
    a(f"""
    v_lshrrev_b32 v{V_T0}, 3, v{V_L15}
    v_lshlrev_b32 v{V_T0}, 10, v{V_T0}
    v_lshlrev_b32 v{V_T1}, 5, v{V_G}
    v_add_u32 v{V_T0}, v{V_T0}, v{V_T1}
    s_lshl_b32 s{S_T0}, s{S_WAVE}, 7
    v_add_u32 v{V_T0}, s{S_T0}, v{V_T0}
    """)
    if xsrc[0] == 'global':
        a(f"""
        buffer_load_dwordx4 {vr(xregs, 4)}, v{V_T0}, {sr(xsrc[1], 4)}, 0 offen
        buffer_load_dwordx4 {vr(xregs + 4, 4)}, v{V_T0}, {sr(xsrc[1], 4)}, 0 offen offset:16
        """)
    else:
        a(f"""
        ds_read_b128 {vr(xregs, 4)}, v{V_T0} offset:{xsrc[1]}
        ds_read_b128 {vr(xregs + 4, 4)}, v{V_T0} offset:{xsrc[1] + 16}
        s_waitcnt lgkmcnt(0)
        """)


def gemv512_wloads(a, srd_w, wbuf):
    a(f"""
    v_lshlrev_b32 v{V_T1}, 17, v{V_G}
    v_lshlrev_b32 v{V_T2}, 4, v{V_L15}
    v_add_u32 v{V_T1}, v{V_T1}, v{V_T2}
    s_lshl_b32 s{S_T0}, s{S_WAVE}, 19
    """)
    for i in range(16):
        a(f"buffer_load_dwordx4 {vr(wbuf[i], 4)}, v{V_T1}, {sr(srd_w, 4)}, s{S_T0} offen{WPOL}")
        if i != 15:
            a(f"s_add_u32 s{S_T0}, s{S_T0}, 8192")


def gemv512_compute(a, wbuf, xregs, acc, tmp, nyounger):
    for i in range(16):
        if nyounger is not None:
            a(f"s_waitcnt vmcnt({15 - i + nyounger})")
        delta_mfma(a, xregs, i, wbuf[i], acc, tmp, first=(i == 0))
    a(f"""
    v_lshrrev_b32 v{V_T0}, 1, v{V_G}
    v_lshlrev_b32 v{V_T0}, 9, v{V_T0}
    v_lshlrev_b32 v{V_T1}, 5, v{V_L15}
    v_add_u32 v{V_T0}, v{V_T0}, v{V_T1}
    v_and_b32 v{V_T1}, 1, v{V_G}
    v_lshlrev_b32 v{V_T1}, 4, v{V_T1}
    v_add_u32 v{V_T0}, v{V_T0}, v{V_T1}
    s_lshl_b32 s{S_T0}, s{S_WAVE}, 10
    v_add_u32 v{V_T0}, s{S_T0}, v{V_T0}
    s_nop 7
    ds_write_b128 v{V_T0}, {vr(acc, 4)} offset:{L_PART}
    s_waitcnt lgkmcnt(0)
    s_barrier
    """)
    a(f"""
    v_and_b32 v{V_T0}, 255, v{V_TID}
    v_lshlrev_b32 v{V_T1}, 2, v{V_T0}
    """)
    for w in range(8):
        a(f"ds_read_b32 v{xregs + w}, v{V_T1} offset:{L_PART + w * 1024}")
    a("s_waitcnt lgkmcnt(0)")
    for w in range(1, 8):
        a(f"v_add_f32 v{xregs}, v{xregs}, v{xregs + w}")
    a(f"""
    v_cvt_pk_bf16_f32 v{xregs}, v{xregs}, v{xregs}
    v_lshlrev_b32 v{V_T1}, 1, v{V_T0}
    ds_write_b16 v{V_T1}, v{xregs} offset:{L_BF2}
    s_waitcnt lgkmcnt(0)
    s_barrier
    """)


def gemv512_phase(a, srd_w, xsrc, wbuf, xregs, acc, tmp, issue_extra=None):
    gemv512_xload(a, xsrc, xregs)
    gemv512_wloads(a, srd_w, wbuf)
    nextra = issue_extra() if issue_extra is not None else 0
    gemv512_compute(a, wbuf, xregs, acc, tmp, nextra)


S_PW = 88


def proj_addr(a, v_off):
    a(f"""
    s_and_b32 s{S_T1}, s{S_WAVE}, 3
    s_lshr_b32 s{S_T2}, s{S_WAVE}, 2
    v_lshlrev_b32 v{v_off}, 14, v{V_G}
    v_lshlrev_b32 v{V_T2}, 4, v{V_L15}
    v_add_u32 v{v_off}, v{v_off}, v{V_T2}
    s_lshl_b32 s{S_PW}, s{S_T2}, 16
    s_lshl_b32 s{S_T3}, s{S_T1}, 8
    s_add_u32 s{S_PW}, s{S_PW}, s{S_T3}
    s_add_u32 s{S_PW + 1}, s{S_PW}, 4096
    s_add_u32 s{S_PW + 2}, s{S_PW}, 8192
    s_add_u32 s{S_PW + 3}, s{S_PW}, 12288
    """)


def proj_load(a, srd_w, v_off, wbuf, i):
    a(f"buffer_load_dwordx4 {vr(wbuf[i], 4)}, v{v_off}, {sr(srd_w, 4)}, s{S_PW + (i >> 2)} offen offset:{(i & 3) * 1024}{WPOL}")


def proj_compute(a, xlds, two_b, wbuf, xregs, acc, tmp, waits=True):
    a(f"""
    s_and_b32 s{S_T1}, s{S_WAVE}, 3
    s_lshr_b32 s{S_T2}, s{S_WAVE}, 2
    v_lshlrev_b32 v{V_T0}, 5, v{V_G}
    s_lshl_b32 s{S_T0}, s{S_T2}, 7
    v_add_u32 v{V_T0}, s{S_T0}, v{V_T0}
    """)
    if two_b:
        a(f"""
        v_lshrrev_b32 v{V_T1}, 3, v{V_L15}
        v_lshlrev_b32 v{V_T1}, 8, v{V_T1}
        v_add_u32 v{V_T0}, v{V_T0}, v{V_T1}
        """)
    a(f"""
    ds_read_b128 {vr(xregs, 4)}, v{V_T0} offset:{xlds}
    ds_read_b128 {vr(xregs + 4, 4)}, v{V_T0} offset:{xlds + 16}
    s_waitcnt lgkmcnt(0)
    """)
    for i in range(16):
        if waits:
            a(f"s_waitcnt vmcnt({15 - i})")
        delta_mfma(a, xregs, i, wbuf[i], acc, tmp, first=(i == 0))
    a(f"""
    v_lshrrev_b32 v{V_T0}, 1, v{V_G}
    v_lshlrev_b32 v{V_T0}, 11, v{V_T0}
    v_lshlrev_b32 v{V_T1}, 5, v{V_L15}
    v_add_u32 v{V_T0}, v{V_T0}, v{V_T1}
    v_and_b32 v{V_T1}, 1, v{V_G}
    v_lshlrev_b32 v{V_T1}, 4, v{V_T1}
    v_add_u32 v{V_T0}, v{V_T0}, v{V_T1}
    s_lshl_b32 s{S_T0}, s{S_T2}, 12
    s_lshl_b32 s{S_T3}, s{S_T1}, 9
    s_add_u32 s{S_T0}, s{S_T0}, s{S_T3}
    v_add_u32 v{V_T0}, s{S_T0}, v{V_T0}
    s_nop 7
    ds_write_b128 v{V_T0}, {vr(acc, 4)} offset:{L_YP}
    s_waitcnt lgkmcnt(0)
    s_barrier
    """)


def stamp(a, slot, wg=None):
    if "stamp" not in EXP:
        return
    skip = a.new("stamp")
    a(f"""
    s_cmp_lg_u32 s{S_WAVE}, 0
    s_cbranch_scc1 {skip}
    s_memrealtime s[92:93]
    s_lshl_b32 s94, s2, 5
    s_add_u32 s94, s94, {WS_END}
    s_add_u32 s96, s{P_WS}, s94
    s_addc_u32 s97, s{P_WS + 1}, 0
    s_mov_b32 s98, 32
    s_mov_b32 s99, 0x00020000
    s_waitcnt lgkmcnt(0)
    v_mov_b32 v10, s92
    v_mov_b32 v11, 0
    buffer_store_dword v10, v11, s[96:99], 0 offen offset:{slot * 4}
    """)
    a.label(skip)


def dstamp(a, slot, invert=False):
    if "dstamp" not in EXP:
        return
    skip = a.new("dstamp")
    a(f"""
    s_cmp_lg_u32 s{S_WAVE}, 0
    s_cbranch_scc1 {skip}
    s_memrealtime s[92:93]
    s_mov_b32 s96, s{P_DBG}
    s_mov_b32 s97, s{P_DBG + 1}
    s_mov_b32 s98, 256
    s_mov_b32 s99, 0x00020000
    s_waitcnt lgkmcnt(0)
    {"s_not_b32 s92, s92" if invert else ""}
    v_mov_b32 v10, s92
    v_mov_b32 v11, 0
    s_mov_b64 exec, 1
    buffer_atomic_umax v10, v11, s[96:99], 0 offen offset:{slot * 4}
    s_mov_b64 exec, -1
    """)
    a.label(skip)


SRD_DBG = 84
V_SY0, V_SY1 = 8, 9


def sync_arrive(a, cnt_off):
    skip = a.new("arr_skip")
    a(f"""
    s_waitcnt vmcnt(0) lgkmcnt(0)
    s_barrier
    s_cmp_lg_u32 s{S_WAVE}, 0
    s_cbranch_scc1 {skip}
    v_mov_b32 v{V_SY0}, 1
    v_mov_b32 v{V_SY1}, 0
    s_mov_b64 exec, 1
    buffer_atomic_add v{V_SY0}, v{V_SY1}, {sr(SRD_DBG, 4)}, 0 offen offset:{cnt_off}
    s_mov_b64 exec, -1
    """)
    a.label(skip)


def sync_wait(a, cnt_off, target):
    skip = a.new("sync_skip")
    poll = a.new("sync_poll")
    done = a.new("sync_done")
    a(f"""
    s_cmp_lg_u32 s{S_WAVE}, 0
    s_cbranch_scc1 {skip}
    v_mov_b32 v{V_SY1}, 0
    s_mov_b32 s{S_T5}, 0
    """)
    a.label(poll)
    a(f"""
    buffer_load_dword v{V_SY0}, v{V_SY1}, {sr(SRD_DBG, 4)}, 0 offen offset:{cnt_off} sc1
    s_add_u32 s{S_T5}, s{S_T5}, 1
    s_waitcnt vmcnt(0)
    v_readfirstlane_b32 s{S_T4}, v{V_SY0}
    s_cmp_ge_u32 s{S_T5}, 0x40000
    s_cbranch_scc1 {done}
    s_cmp_ge_u32 s{S_T4}, {target}
    s_cbranch_scc1 {done}
    s_sleep 1
    s_branch {poll}
    """)
    a.label(done)
    a.label(skip)
    a("s_barrier")


A_C = 32


def attnA_preload(a):
    a(f"""
    s_lshr_b32 s{S_B}, s2, 5
    s_and_b32 s{S_Q}, s2, 31
    s_lshl_b32 s{S_T0}, s{S_B}, 23
    s_lshl_b32 s{S_T1}, s{S_Q}, 18
    s_add_u32 s{S_OFF}, s{S_T0}, s{S_T1}
    """)
    make_srd(a, SRD4, P_CKV, S_OFF, 256 * 1024)
    a(f"""
    v_and_b32 v{V_T0}, 7, v{V_LANE}
    v_lshrrev_b32 v{V_T1}, 3, v{V_LANE}
    v_lshlrev_b32 v{V_T2}, 10, v{V_T1}
    v_lshlrev_b32 v{V_T3}, 4, v{V_T0}
    v_add_u32 v{V_T2}, v{V_T2}, v{V_T3}
    s_lshl_b32 s{S_T0}, s{S_WAVE}, 7
    v_add_u32 v31, s{S_T0}, v{V_T2}
    s_mov_b32 s{S_T0}, 0
    """)
    for t in range(8):
        for kk in range(4):
            a(f"buffer_load_dwordx4 {vr(A_C + 16 * t + 4 * kk, 4)}, v31, {sr(SRD4, 4)}, s{S_T0} offen nt")
            if not (t == 7 and kk == 3):
                a(f"s_add_u32 s{S_T0}, s{S_T0}, 8192")
    return 32


def stage_prepA(a):
    a(f"""
    s_and_b32 s{S_H}, s2, 31
    s_lshl_b32 s{S_OFF}, s{S_H}, 8
    """)
    make_srd(a, SRD0, P_AX, None, 2048)
    make_srd(a, SRD1, P_AWQ, S_OFF, 0)
    a(f"s_sub_u32 s{SRD1 + 2}, {512 * 8192}, s{S_OFF}")
    make_srd(a, SRD2, P_WUK, S_OFF, 0)
    a(f"s_sub_u32 s{SRD2 + 2}, {512 * 8192}, s{S_OFF}")
    make_srd_imm(a, SRD3, P_WS, WS_QP, 65536)
    wbuf = [160 + 4 * i for i in range(16)]
    ubuf = [224 + 4 * i for i in range(8)]
    QF = 160
    ACC = 176

    def extra():
        a(f"""
        v_lshlrev_b32 v30, 13, v{V_L15}
        v_lshlrev_b32 v{V_T2}, 4, v{V_G}
        v_add_u32 v30, v30, v{V_T2}
        s_lshr_b32 s{S_T1}, s2, 5
        s_lshl_b32 s{S_T1}, s{S_T1}, 21
        s_lshl_b32 s{S_T2}, s{S_WAVE}, 18
        s_add_u32 s{S_T1}, s{S_T1}, s{S_T2}
        s_add_u32 s{S_T2}, s{S_T1}, {16 * 8192}
        """)
        for t in range(2):
            for j in range(4):
                a(f"buffer_load_dwordx4 {vr(ubuf[t * 4 + j], 4)}, v30, {sr(SRD2, 4)}, s{S_T1 + t} offen offset:{64 * j}{WPOL}")
        return 8

    gemv512_phase(a, SRD1, ('global', SRD0), wbuf, 12, 20, 24, issue_extra=extra)
    a(f"""
    v_and_b32 v{V_T0}, 1, v{V_L15}
    v_lshlrev_b32 v{V_T0}, 8, v{V_T0}
    v_lshlrev_b32 v{V_T1}, 4, v{V_G}
    v_add_u32 v{V_T0}, v{V_T0}, v{V_T1}
    """)
    for j in range(4):
        a(f"ds_read_b128 {vr(QF + 4 * j, 4)}, v{V_T0} offset:{L_BF2 + 64 * j}")
    a(f"""
    v_lshlrev_b32 v{V_T0}, 15, v{V_L15}
    v_lshlrev_b32 v{V_T2}, 3, v{V_G}
    v_add_u32 v{V_T0}, v{V_T0}, v{V_T2}
    s_lshl_b32 s{S_T0}, s{S_H}, 10
    s_lshr_b32 s{S_T1}, s2, 5
    s_lshl_b32 s{S_T1}, s{S_T1}, 9
    s_add_u32 s{S_T0}, s{S_T0}, s{S_T1}
    s_lshl_b32 s{S_T1}, s{S_WAVE}, 6
    s_add_u32 s{S_T0}, s{S_T0}, s{S_T1}
    v_add_u32 v{V_T0}, s{S_T0}, v{V_T0}
    s_waitcnt lgkmcnt(0) vmcnt(0)
    """)
    for t in range(2):
        acc = ACC + 4 * t
        for j in range(4):
            c = "0" if j == 0 else vr(acc, 4)
            a(f"v_mfma_f32_16x16x32_bf16 {vr(acc, 4)}, {vr(ubuf[t * 4 + j], 4)}, {vr(QF + 4 * j, 4)}, {c}")
    a("s_nop 7\ns_nop 3")
    a(f"v_cmp_gt_u32 vcc, 2, v{V_L15}\ns_and_saveexec_b64 {sr(S_SAVE, 2)}, vcc")
    for t in range(2):
        acc = ACC + 4 * t
        a(f"""
        v_cvt_pk_bf16_f32 v{16 + 2 * t}, v{acc}, v{acc + 1}
        v_cvt_pk_bf16_f32 v{17 + 2 * t}, v{acc + 2}, v{acc + 3}
        buffer_store_dwordx2 {vr(16 + 2 * t, 2)}, v{V_T0}, {sr(SRD3, 4)}, 0 offen offset:{32 * t} sc1
        """)
    a(f"s_mov_b64 exec, {sr(S_SAVE, 2)}")


def gen_B_role(a):
    DEPTH = int(os.environ.get('BDEPTH', '3'))
    KBUF = [64 + 32 * i for i in range(DEPTH)]
    VBUF = [80 + 32 * i for i in range(DEPTH)]
    WO = [64 + 32 * DEPTH + 4 * i for i in range(16)]
    QF = 32
    AT = 48
    V_S = 12
    V_O = 16
    V_PK = 20
    V_L, V_TM, V_M, V_NMC = 24, 25, 26, 27
    V_WOFF, V_OFFK, V_OFFV = 29, 30, 31
    S_CNT = 77
    NT = os.environ.get("KVPOL", " nt")
    WAITN = 8 * DEPTH - 4
    stamp(a, 0)
    dstamp(a, 8, True)
    a(f"""
    s_sub_u32 s{S_T0}, s2, {NA_WG}
    s_and_b32 s{S_T1}, s{S_T0}, 7
    s_lshr_b32 s{S_T2}, s{S_T0}, 3
    s_and_b32 s{S_T3}, s{S_T2}, 3
    s_lshl_b32 s{S_T3}, s{S_T3}, 3
    s_add_u32 s{S_H}, s{S_T1}, s{S_T3}
    s_lshr_b32 s{S_T2}, s{S_T2}, 2
    s_cmp_ge_u32 s{S_T2}, 3
    s_cselect_b32 s{S_B}, 1, 0
    s_mul_i32 s{S_T3}, s{S_B}, 3
    s_sub_u32 s{S_Q}, s{S_T2}, s{S_T3}
    """)
    a(f"""
    s_lshl_b32 s{S_T0}, s{S_B}, 5
    s_add_u32 s{S_T0}, s{S_T0}, s{S_H}
    s_lshl_b32 s{S_T0}, s{S_T0}, 21
    s_mul_i32 s{S_T1}, s{S_Q}, {171 * 4096}
    s_add_u32 s{S_T0}, s{S_T0}, s{S_T1}
    s_lshl_b32 s{S_T1}, s{S_WAVE}, 12
    s_add_u32 s{S_OFF}, s{S_T0}, s{S_T1}
    s_cmp_eq_u32 s{S_Q}, 2
    s_cselect_b32 s{S_T2}, 1, 0
    s_sub_u32 s{S_T2}, 171, s{S_T2}
    s_sub_u32 s{S_T2}, s{S_T2}, s{S_WAVE}
    s_add_u32 s{S_CNT}, s{S_T2}, 7
    s_lshr_b32 s{S_CNT}, s{S_CNT}, 3
    """)
    make_srd(a, SRD0, P_BK, S_OFF, 0)
    make_srd(a, SRD1, P_BV, S_OFF, 0)
    a(f"s_lshl_b32 s{SRD0 + 2}, s{S_T2}, 12\ns_lshl_b32 s{SRD1 + 2}, s{S_T2}, 12")
    make_srd(a, SRD2, P_BX, None, 2048)
    a(f"s_lshl_b32 s{S_OFF}, s{S_H}, 8")
    make_srd(a, SRD3, P_BWQ, S_OFF, 0)
    a(f"s_sub_u32 s{SRD3 + 2}, {512 * 8192}, s{S_OFF}")
    a(f"s_lshl_b32 s{S_OFF}, s{S_H}, 17")
    make_srd(a, SRD4, P_BWO, S_OFF, 131072)
    a(f"""
    v_lshlrev_b32 v{V_OFFK}, 8, v{V_L15}
    v_lshlrev_b32 v{V_T0}, 4, v{V_G}
    v_add_u32 v{V_OFFK}, v{V_OFFK}, v{V_T0}
    v_lshlrev_b32 v{V_OFFV}, 10, v{V_G}
    v_lshlrev_b32 v{V_T0}, 4, v{V_L15}
    v_add_u32 v{V_OFFV}, v{V_OFFV}, v{V_T0}
    """)
    proj_addr(a, V_WOFF)

    def loadK(buf, soff):
        for j in range(4):
            a(f"buffer_load_dwordx4 {vr(buf + 4 * j, 4)}, v{V_OFFV}, {sr(SRD0, 4)}, {soff} offen offset:{256 * j}{NT}")

    def loadV(buf, soff):
        for i in range(4):
            a(f"buffer_load_dwordx4 {vr(buf + 4 * i, 4)}, v{V_OFFV}, {sr(SRD1, 4)}, {soff} offen offset:{256 * i}{NT}")

    def extra():
        a(f"s_mov_b32 s{S_LOOP}, 0")
        for d in range(DEPTH):
            loadK(KBUF[d], f"s{S_LOOP}")
            loadV(VBUF[d], f"s{S_LOOP}")
            a(f"s_add_u32 s{S_LOOP}, s{S_LOOP}, 32768")
        return 8 * DEPTH

    gemv512_phase(a, SRD3, ('global', SRD2), WO, 12, 20, 24, issue_extra=extra)
    for i in range(16):
        proj_load(a, SRD4, V_WOFF, WO, i)
    a(f"""
    v_lshlrev_b32 v{V_T0}, 4, v{V_L15}
    s_lshl_b32 s{S_T0}, s{S_B}, 8
    v_add_u32 v{V_T0}, s{S_T0}, v{V_T0}
    ds_read_b128 {vr(QF, 4)}, v{V_T0} offset:{L_BF2}
    """)
    a(f"""
    v_mov_b32 v{V_L}, 0
    v_mov_b32 v{V_M}, 0xff800000
    v_mov_b32 v{V_NMC}, 0
    v_mov_b32 v{V_O}, 0
    v_mov_b32 v{V_O + 1}, 0
    v_mov_b32 v{V_O + 2}, 0
    v_mov_b32 v{V_O + 3}, 0
    s_waitcnt lgkmcnt(0)
    """)
    rare_blocks = []
    stamp(a, 1)
    dstamp(a, 11)

    def tile(K, V):
        rare = a.new("brare")
        back = a.new("bback")
        a(f"s_waitcnt vmcnt({WAITN})")
        for j in range(4):
            for i in range(4):
                c = "0" if j == 0 else f"v{V_S + i}"
                a(f"v_dot2_f32_bf16 v{V_S + i}, v{K + 4 * i + j}, v{QF + j}, {c}")
        loadK(K, f"s{S_LOOP}")
        for r in (8, 4, 2, 1):
            for i in range(4):
                a(f"v_add_f32_dpp v{V_S + i}, v{V_S + i}, v{V_S + i} row_ror:{r} row_mask:0xf bank_mask:0xf")
        a(f"""
        v_max3_f32 v{V_TM}, v{V_S}, v{V_S + 1}, v{V_S + 2}
        v_max_f32 v{V_TM}, v{V_TM}, v{V_S + 3}
        v_cmp_gt_f32 vcc, v{V_TM}, v{V_M}
        s_cbranch_vccnz {rare}
        """)
        a.label(back)
        for i in range(4):
            a(f"v_fma_f32 v{V_S + i}, v{V_S + i}, s{S_C}, v{V_NMC}")
        for i in range(4):
            a(f"v_exp_f32 v{V_S + i}, v{V_S + i}")
        a("s_nop 0")
        for i in range(4):
            a(f"v_cvt_pk_bf16_f32 v{V_PK + i}, v{V_S + i}, v{V_S + i}")
        a(f"""
        v_add_f32 v{V_S}, v{V_S}, v{V_S + 1}
        v_add_f32 v{V_S + 2}, v{V_S + 2}, v{V_S + 3}
        v_add_f32 v{V_L}, v{V_L}, v{V_S}
        v_add_f32 v{V_L}, v{V_L}, v{V_S + 2}
        """)
        for i in range(4):
            for j in range(4):
                a(f"v_and_b32 v{AT + 4 * i + j}, v{V_PK + i}, v{V_MASK + j}")
        a(f"s_waitcnt vmcnt({WAITN})")
        for i in range(4):
            a(f"v_mfma_f32_16x16x32_bf16 {vr(V_O, 4)}, {vr(AT + 4 * i, 4)}, {vr(V + 4 * i, 4)}, {vr(V_O, 4)}")
        loadV(V, f"s{S_LOOP}")
        a(f"s_add_u32 s{S_LOOP}, s{S_LOOP}, 32768")
        a(f"s_sub_u32 s{S_CNT}, s{S_CNT}, 1\ns_cmp_eq_u32 s{S_CNT}, 0")
        rare_blocks.append((rare, back))

    loop = a.new("bloop")
    done = a.new("bdone")
    a.label(loop)
    for d in range(DEPTH):
        tile(KBUF[d], VBUF[d])
        if d != DEPTH - 1:
            a(f"s_cbranch_scc1 {done}")
        else:
            a(f"s_cbranch_scc0 {loop}")
    a(f"s_branch {done}")
    for rare, back in rare_blocks:
        a.label(rare)
        a(f"""
        v_readlane_b32 s{S_R2}, v{V_TM}, 0
        v_readlane_b32 s{S_R3}, v{V_TM}, 16
        v_readlane_b32 s{S_T4}, v{V_TM}, 32
        v_readlane_b32 s{S_T5}, v{V_TM}, 48
        s_nop 1
        v_max_f32 v{V_TM}, s{S_R2}, v{V_M}
        v_max_f32 v{V_TM}, s{S_R3}, v{V_TM}
        v_max_f32 v{V_TM}, s{S_T4}, v{V_TM}
        v_max_f32 v{V_TM}, s{S_T5}, v{V_TM}
        v_sub_f32 v{V_T0}, v{V_M}, v{V_TM}
        v_mul_f32 v{V_T0}, s{S_C}, v{V_T0}
        v_exp_f32 v{V_T0}, v{V_T0}
        v_mov_b32 v{V_M}, v{V_TM}
        v_mul_f32 v{V_NMC}, s{S_C}, v{V_TM}
        v_sub_f32 v{V_NMC}, 0, v{V_NMC}
        v_mul_f32 v{V_L}, v{V_L}, v{V_T0}
        v_mul_f32 v{V_O}, v{V_O}, v{V_T0}
        v_mul_f32 v{V_O + 1}, v{V_O + 1}, v{V_T0}
        v_mul_f32 v{V_O + 2}, v{V_O + 2}, v{V_T0}
        v_mul_f32 v{V_O + 3}, v{V_O + 3}, v{V_T0}
        s_branch {back}
        """)
    a.label(done)
    a(f"""
    s_nop 7
    v_readlane_b32 s{S_R2}, v{V_L}, 0
    v_readlane_b32 s{S_R3}, v{V_L}, 16
    v_readlane_b32 s{S_T4}, v{V_L}, 32
    v_readlane_b32 s{S_T5}, v{V_L}, 48
    s_nop 1
    v_mov_b32 v{V_L}, s{S_R2}
    v_add_f32 v{V_L}, s{S_R3}, v{V_L}
    v_add_f32 v{V_L}, s{S_T4}, v{V_L}
    v_add_f32 v{V_NMC}, s{S_T5}, v{V_L}
    v_lshlrev_b32 v{V_T0}, 5, v{V_L15}
    v_lshlrev_b32 v{V_T1}, 4, v{V_G}
    v_add_u32 v{V_T0}, v{V_T0}, v{V_T1}
    s_lshl_b32 s{S_T0}, s{S_WAVE}, 9
    v_add_u32 v{V_T0}, s{S_T0}, v{V_T0}
    s_lshl_b32 s{S_T0}, s{S_WAVE}, 3
    v_mov_b32 v{V_T1}, s{S_T0}
    v_cmp_gt_u32 vcc, 32, v{V_LANE}
    s_and_saveexec_b64 {sr(S_SAVE, 2)}, vcc
    ds_write_b128 v{V_T0}, {vr(V_O, 4)} offset:{L_PART}
    ds_write_b64 v{V_T1}, {vr(V_M, 2)} offset:{L_STAT}
    s_mov_b64 exec, {sr(S_SAVE, 2)}
    s_waitcnt lgkmcnt(0)
    s_barrier
    """)
    ST = 32
    a(f"v_mov_b32 v{V_T0}, 0")
    for k in range(4):
        a(f"ds_read_b128 {vr(ST + 4 * k, 4)}, v{V_T0} offset:{L_STAT + 16 * k}")
    a(f"""
    v_and_b32 v{V_T1}, 127, v{V_TID}
    v_lshlrev_b32 v{V_T2}, 2, v{V_T1}
    """)
    for w in range(8):
        a(f"ds_read_b32 v{48 + w}, v{V_T2} offset:{L_PART + 512 * w}")
    a("s_waitcnt lgkmcnt(0)")
    MG = 56
    a(f"""
    v_max3_f32 v{MG}, v{ST}, v{ST + 2}, v{ST + 4}
    v_max3_f32 v{MG}, v{MG}, v{ST + 6}, v{ST + 8}
    v_max3_f32 v{MG}, v{MG}, v{ST + 10}, v{ST + 12}
    v_max_f32 v{MG}, v{MG}, v{ST + 14}
    """)
    for w in range(8):
        a(f"""
        v_sub_f32 v{ST + 2 * w}, v{ST + 2 * w}, v{MG}
        v_mul_f32 v{ST + 2 * w}, s{S_C}, v{ST + 2 * w}
        v_exp_f32 v{ST + 2 * w}, v{ST + 2 * w}
        """)
    LG = 57
    a(f"s_nop 0\nv_mul_f32 v{LG}, v{ST}, v{ST + 1}\nv_mul_f32 v58, v{ST}, v48")
    for w in range(1, 8):
        a(f"v_fmac_f32 v{LG}, v{ST + 2 * w}, v{ST + 2 * w + 1}")
        a(f"v_fmac_f32 v58, v{ST + 2 * w}, v{48 + w}")
    a(f"""
    v_cvt_pk_bf16_f32 v58, v58, v58
    v_lshlrev_b32 v{V_T1}, 1, v{V_T1}
    ds_write_b16 v{V_T1}, v58 offset:{L_BF}
    s_waitcnt lgkmcnt(0) vmcnt(0)
    s_barrier
    """)
    stamp(a, 2)
    proj_compute(a, L_BF, False, WO, 12, 20, 24, waits=False)
    stamp(a, 3)
    dstamp(a, 9)
    dstamp(a, 12, True)
    a(f"""
    s_lshl_b32 s{S_T0}, s{S_B}, 5
    s_add_u32 s{S_T0}, s{S_T0}, s{S_H}
    s_lshl_b32 s{S_T0}, s{S_T0}, 2
    s_add_u32 s{S_T0}, s{S_T0}, s{S_Q}
    s_lshl_b32 s{S_OFF}, s{S_T0}, 11
    s_add_u32 s{S_OFF}, s{S_OFF}, {WS_YB}
    """)
    make_srd(a, SRD3, P_WS, S_OFF, 2048)
    a(f"""
    s_lshl_b32 s{S_OFF}, s{S_T0}, 3
    s_add_u32 s{S_OFF}, s{S_OFF}, {WS_BSTAT}
    """)
    make_srd(a, SRD4, P_WS, S_OFF, 8)
    a(f"""
    v_lshlrev_b32 v{V_T0}, 2, v{V_TID}
    ds_read_b32 v{V_T1}, v{V_T0} offset:{L_YP}
    ds_read_b32 v{V_T2}, v{V_T0} offset:{L_YP + 4096}
    s_waitcnt lgkmcnt(0)
    v_add_f32 v{V_T1}, v{V_T1}, v{V_T2}
    buffer_store_dword v{V_T1}, v{V_T0}, {sr(SRD3, 4)}, 0 offen
    v_lshlrev_b32 v{V_T0}, 3, v{V_TID}
    buffer_store_dwordx2 {vr(MG, 2)}, v{V_T0}, {sr(SRD4, 4)}, 0 offen
    s_endpgm
    """)


LA_X = 0
LA_S = 65536
LA_T = 73728
LA_ROW = 144
LA_TILE = 32 * LA_ROW
LA_END = LA_T + 8 * 2 * LA_TILE


def stage_attnA(a):
    QF = 160
    ACC = 176
    V_S = 208
    TX = 240
    V_P = 8
    V_WT, V_XW, V_XR, V_TR, V_M = 3, 4, 5, 6, 7
    V_AF = 24
    V_L, V_NMC, V_TM, V_RS = 252, 253, 254, 255
    a(f"s_lshl_b32 s{S_OFF}, s{S_B}, 15")
    make_srd(a, SRD1, P_WS, S_OFF, 32768)
    a(f"""
    v_and_b32 v{V_T0}, 31, v{V_LANE}
    v_lshrrev_b32 v{V_T1}, 5, v{V_LANE}
    v_lshlrev_b32 v{V_T3}, 4, v{V_T1}
    v_lshlrev_b32 v{V_T2}, 10, v{V_T0}
    v_add_u32 v{V_T2}, v{V_T2}, v{V_T3}
    s_lshl_b32 s{S_T0}, s{S_WAVE}, 7
    v_add_u32 v{V_T2}, s{S_T0}, v{V_T2}
    """)
    for kk in range(4):
        a(f"buffer_load_dwordx4 {vr(QF + 4 * kk, 4)}, v{V_T2}, {sr(SRD1, 4)}, 0 offen offset:{32 * kk} sc1")
    a(f"""
    s_mul_i32 s{S_T0}, s{S_WAVE}, {2 * LA_TILE}
    s_add_u32 s{S_T0}, s{S_T0}, {LA_T}
    v_mul_u32_u24 v{V_AF}, {LA_ROW}, v{V_T0}
    v_add_u32 v{V_AF}, v{V_AF}, v{V_T3}
    v_add_u32 v{V_AF}, s{S_T0}, v{V_AF}
    v_lshrrev_b32 v13, 3, v{V_LANE}
    v_mul_u32_u24 v13, {LA_ROW}, v13
    v_and_b32 v14, 7, v{V_LANE}
    v_lshlrev_b32 v14, 4, v14
    v_add_u32 v13, v13, v14
    v_add_u32 v13, s{S_T0}, v13
    v_lshlrev_b32 v14, 4, v{V_LANE}
    s_lshl_b32 s{S_T1}, s{S_WAVE}, 13
    v_add_u32 v15, s{S_T1}, v14
    s_lshr_b32 s{S_T1}, s{S_WAVE}, 1
    s_lshl_b32 s{S_T1}, s{S_T1}, 10
    s_and_b32 s{S_T2}, s{S_WAVE}, 1
    s_lshl_b32 s{S_T2}, s{S_T2}, 3
    s_add_u32 s{S_T1}, s{S_T1}, s{S_T2}
    v_add_u32 v{V_RS}, s{S_T1}, v14
    """)
    a(f"""
    v_lshrrev_b32 v{V_T0}, 1, v{V_G}
    v_lshlrev_b32 v{V_T0}, 2, v{V_T0}
    v_lshrrev_b32 v{V_T1}, 2, v{V_L15}
    v_add_u32 v{V_T0}, v{V_T0}, v{V_T1}
    v_mul_u32_u24 v{V_T0}, {LA_ROW}, v{V_T0}
    v_and_b32 v{V_T1}, 1, v{V_G}
    v_lshlrev_b32 v{V_T1}, 5, v{V_T1}
    v_add_u32 v{V_T0}, v{V_T0}, v{V_T1}
    v_and_b32 v{V_T1}, 3, v{V_L15}
    v_lshlrev_b32 v{V_T1}, 3, v{V_T1}
    v_add_u32 v{V_T0}, v{V_T0}, v{V_T1}
    v_add_u32 v{V_TR}, s{S_T0}, v{V_T0}
    v_mov_b32 v{V_WT}, v13
    v_add_u32 v{V_XR}, {LA_S}, v14
    v_add_u32 v25, {LA_S}, v{V_RS}
    v_mov_b32 v{V_XW}, v15
    v_mov_b32 v{V_M}, 0xff800000
    v_mov_b32 v{V_L}, 0
    v_mov_b32 v{V_NMC}, 0
    """)
    for i in range(32):
        a(f"v_mov_b32 v{ACC + i}, 0")
    a("s_waitcnt vmcnt(0)")
    stamp(a, 6)
    rare_blocks = []

    def rnd(C):
        rare = a.new("arare")
        back = a.new("aback")
        for tl in range(2):
            for kk in range(4):
                a(f"ds_write_b128 v{V_WT}, {vr(C + 16 * tl + 4 * kk, 4)} offset:{tl * LA_TILE + kk * 8 * LA_ROW}")
        a("s_waitcnt lgkmcnt(0)")
        for tl in range(2):
            for kk in range(4):
                a(f"ds_read_b128 {vr(V_P + 4 * kk, 4)}, v{V_AF} offset:{tl * LA_TILE + 32 * kk}")
            for kk in range(4):
                a(f"s_waitcnt lgkmcnt({3 - kk})")
                c = "0" if kk == 0 else vr(V_S + 16 * tl, 16)
                a(f"v_mfma_f32_32x32x16_bf16 {vr(V_S + 16 * tl, 16)}, {vr(V_P + 4 * kk, 4)}, {vr(QF + 4 * kk, 4)}, {c}")
        a("s_nop 7")
        for q in range(4):
            a(f"ds_write_b128 v{V_XW}, {vr(V_S + 4 * q, 4)} offset:{LA_X + q * 1024}")
        a("s_nop 3")
        for q in range(4):
            a(f"ds_write_b128 v{V_XW}, {vr(V_S + 16 + 4 * q, 4)} offset:{LA_X + 4096 + q * 1024}")
        a("s_waitcnt lgkmcnt(0)")
        a("s_barrier")
        for tl in range(2):
            for w in range(8):
                a(f"ds_read_b64 {vr(V_S + 16 * tl + 2 * w, 2)}, v{V_RS} offset:{LA_X + w * 8192 + tl * 4096}")
        for tl in range(2):
            for w in range(1, 8):
                a(f"s_waitcnt lgkmcnt({15 - 8 * tl - w})")
                a(f"v_add_f32 v{V_S + 16 * tl}, v{V_S + 16 * tl}, v{V_S + 16 * tl + 2 * w}")
                a(f"v_add_f32 v{V_S + 16 * tl + 1}, v{V_S + 16 * tl + 1}, v{V_S + 16 * tl + 2 * w + 1}")
        a(f"""
        ds_write_b64 v25, {vr(V_S, 2)}
        ds_write_b64 v25, {vr(V_S + 16, 2)} offset:4096
        s_waitcnt lgkmcnt(0)
        s_barrier
        """)
        for q in range(8):
            a(f"ds_read_b128 {vr(V_S + 4 * q, 4)}, v{V_XR} offset:{q * 1024}")
        units = [(tl, ct, kh) for tl in range(2) for kh in range(2) for ct in range(2)]

        def trread(u):
            tl, ct, kh = units[u]
            t = TX + 4 * (u % 3)
            base = tl * LA_TILE + (kh * 16) * LA_ROW + ct * 64
            a(f"ds_read_b64_tr_b16 {vr(t, 2)}, v{V_TR} offset:{base}")
            a(f"ds_read_b64_tr_b16 {vr(t + 2, 2)}, v{V_TR} offset:{base + 8 * LA_ROW}")
        for u in range(3):
            trread(u)
        a("s_waitcnt lgkmcnt(6)")
        a(f"v_max3_f32 v{V_TM}, v{V_S}, v{V_S + 1}, v{V_S + 2}")
        for k in range(3, 31, 2):
            a(f"v_max3_f32 v{V_TM}, v{V_TM}, v{V_S + k}, v{V_S + k + 1}")
        a(f"""
        v_max_f32 v{V_TM}, v{V_TM}, v{V_S + 31}
        v_cmp_gt_f32 vcc, v{V_TM}, v{V_M}
        s_cbranch_vccnz {rare}
        """)
        a.label(back)
        for i in range(32):
            a(f"v_fma_f32 v{V_S + i}, v{V_S + i}, s{S_C}, v{V_NMC}")
        for i in range(32):
            a(f"v_exp_f32 v{V_S + i}, v{V_S + i}")
        a("s_nop 0")
        for i in range(16):
            a(f"v_cvt_pk_bf16_f32 v{V_P + i}, v{V_S + 2 * i}, v{V_S + 2 * i + 1}")
        a("s_nop 1")
        adds = []
        for st in (1, 2, 4, 8, 16):
            for i in range(0, 32, 2 * st):
                adds.append(f"v_add_f32 v{V_S + i}, v{V_S + i}, v{V_S + i + st}")
        adds.append(f"v_add_f32 v{V_L}, v{V_L}, v{V_S}")
        for u in range(8):
            tl, ct, kh = units[u]
            t = TX + 4 * (u % 3)
            a(f"s_waitcnt lgkmcnt({2 * min(2, 7 - u)})")
            a(f"v_mfma_f32_32x32x16_bf16 {vr(ACC + 16 * ct, 16)}, {vr(t, 4)}, {vr(V_P + 8 * tl + 4 * kh, 4)}, {vr(ACC + 16 * ct, 16)}")
            if u + 3 < 8:
                trread(u + 3)
            for x in adds[4 * u: 4 * u + 4]:
                a(x)
        rare_blocks.append((rare, back))

    for r in range(4):
        rnd(A_C + 32 * r)
        if r == 0:
            stamp(a, 7)
    done = a.new("adone")
    a(f"s_branch {done}")
    for rare, back in rare_blocks:
        a.label(rare)
        a(f"""
        v_mov_b32 v{V_P}, v{V_TM}
        v_mov_b32 v{V_P + 1}, v{V_TM}
        s_nop 1
        v_permlane32_swap_b32 v{V_P}, v{V_P + 1}
        s_nop 1
        v_max3_f32 v{V_TM}, v{V_P}, v{V_P + 1}, v{V_M}
        v_sub_f32 v{V_P}, v{V_M}, v{V_TM}
        v_mul_f32 v{V_P}, s{S_C}, v{V_P}
        v_exp_f32 v{V_P}, v{V_P}
        v_mov_b32 v{V_M}, v{V_TM}
        v_mul_f32 v{V_NMC}, s{S_C}, v{V_TM}
        v_sub_f32 v{V_NMC}, 0, v{V_NMC}
        v_mul_f32 v{V_L}, v{V_L}, v{V_P}
        """)
        for i in range(32):
            a(f"v_mul_f32 v{ACC + i}, v{ACC + i}, v{V_P}")
        a(f"s_branch {back}")
    a.label(done)
    a(f"""
    s_lshl_b32 s{S_T0}, s2, 15
    s_add_u32 s{S_OFF}, s{S_T0}, {WS_APART}
    """)
    make_srd(a, SRD2, P_WS, S_OFF, 32768)
    a(f"""
    s_lshl_b32 s{S_T0}, s{S_B}, 13
    s_lshl_b32 s{S_T1}, s{S_Q}, 3
    s_add_u32 s{S_T0}, s{S_T0}, s{S_T1}
    s_add_u32 s{S_OFF}, s{S_T0}, {WS_ASTAT}
    """)
    make_srd(a, SRD3, P_WS, S_OFF, 8192 - 248)
    a(f"""
    s_mul_i32 s{S_T0}, s{S_WAVE}, {2 * LA_TILE}
    s_add_u32 s{S_T0}, s{S_T0}, {LA_T}
    v_and_b32 v{TX}, 31, v{V_LANE}
    v_lshrrev_b32 v{TX + 1}, 5, v{V_LANE}
    v_mul_u32_u24 v{TX + 2}, 272, v{TX}
    v_lshlrev_b32 v{TX + 1}, 4, v{TX + 1}
    v_add_u32 v{TX + 2}, v{TX + 2}, v{TX + 1}
    v_add_u32 v{TX + 2}, s{S_T0}, v{TX + 2}
    v_lshrrev_b32 v{TX + 3}, 3, v{V_LANE}
    v_and_b32 v{TX + 4}, 7, v{V_LANE}
    v_mul_u32_u24 v{TX + 5}, 272, v{TX + 3}
    v_lshlrev_b32 v{TX + 7}, 5, v{TX + 4}
    v_add_u32 v{TX + 5}, v{TX + 5}, v{TX + 7}
    v_add_u32 v{TX + 5}, s{S_T0}, v{TX + 5}
    v_lshlrev_b32 v{TX + 6}, 10, v{TX + 3}
    v_lshlrev_b32 v{TX + 7}, 4, v{TX + 4}
    v_add_u32 v{TX + 6}, v{TX + 6}, v{TX + 7}
    s_lshl_b32 s{S_T0}, s{S_WAVE}, 7
    v_add_u32 v{TX + 6}, s{S_T0}, v{TX + 6}
    s_nop 7
    s_nop 3
    """)
    for ct in range(2):
        for q4 in range(4):
            a(f"ds_write_b128 v{TX + 2}, {vr(ACC + 16 * ct + 4 * q4, 4)} offset:{ct * 128 + q4 * 32}")
    a("s_waitcnt lgkmcnt(0)")
    for j in range(4):
        a(f"ds_read_b128 {vr(ACC + 8 * j, 4)}, v{TX + 5} offset:{j * 8 * 272}")
        a(f"ds_read_b128 {vr(ACC + 8 * j + 4, 4)}, v{TX + 5} offset:{j * 8 * 272 + 16}")
    a(f"s_mov_b32 s{S_T0}, 0")
    for j in range(4):
        a(f"s_waitcnt lgkmcnt({6 - 2 * j})")
        for i in range(4):
            a(f"v_cvt_pk_bf16_f32 v{V_S + 4 * j + i}, v{ACC + 8 * j + 2 * i}, v{ACC + 8 * j + 2 * i + 1}")
        a(f"buffer_store_dwordx4 {vr(V_S + 4 * j, 4)}, v{TX + 6}, {sr(SRD2, 4)}, s{S_T0} offen sc1")
        if j != 3:
            a(f"s_add_u32 s{S_T0}, s{S_T0}, 8192")
    a(f"""
    v_mov_b32 v{TX + 8}, v{V_L}
    v_mov_b32 v{TX + 9}, v{V_L}
    s_nop 1
    v_permlane32_swap_b32 v{TX + 8}, v{TX + 9}
    s_nop 1
    v_add_f32 v{TX + 11}, v{TX + 8}, v{TX + 9}
    v_mov_b32 v{TX + 10}, v{V_M}
    v_lshlrev_b32 v{TX + 3}, 8, v{V_TID}
    buffer_store_dwordx2 {vr(TX + 10, 2)}, v{TX + 3}, {sr(SRD3, 4)}, 0 offen sc1
    """)


F_WUV = [128 + 4 * i for i in range(16)]
F_WO = [192 + 4 * i for i in range(16)]


def finishA_prefetch(a):
    a(f"""
    s_and_b32 s{S_H}, s2, 31
    s_lshr_b32 s{S_B}, s2, 5
    s_lshl_b32 s{S_OFF}, s{S_H}, 8
    """)
    make_srd(a, SRD2, P_WUV, S_OFF, 0)
    a(f"s_sub_u32 s{SRD2 + 2}, {512 * 8192}, s{S_OFF}")
    a(f"s_lshl_b32 s{S_OFF}, s{S_H}, 17")
    make_srd(a, SRD3, P_AWO, S_OFF, 131072)
    gemv512_wloads(a, SRD2, F_WUV)
    proj_addr(a, 31)
    for i in range(16):
        proj_load(a, SRD3, 31, F_WO, i)


def stage_finishA(a):
    a(f"""
    s_lshl_b32 s{S_T0}, s{S_B}, 20
    s_lshl_b32 s{S_T1}, s{S_H}, 10
    s_add_u32 s{S_T0}, s{S_T0}, s{S_T1}
    s_add_u32 s{S_OFF}, s{S_T0}, {WS_APART}
    """)
    make_srd(a, SRD0, P_WS, S_OFF, 31 * 32768 + 1024)
    a(f"""
    s_lshl_b32 s{S_T0}, s{S_B}, 13
    s_lshl_b32 s{S_T1}, s{S_H}, 8
    s_add_u32 s{S_T0}, s{S_T0}, s{S_T1}
    s_add_u32 s{S_OFF}, s{S_T0}, {WS_ASTAT}
    """)
    make_srd(a, SRD1, P_WS, S_OFF, 256)
    a(f"""
    s_lshl_b32 s{S_T0}, s{S_H}, 12
    s_lshl_b32 s{S_T1}, s{S_B}, 11
    s_add_u32 s{S_T0}, s{S_T0}, s{S_T1}
    s_add_u32 s{S_OFF}, s{S_T0}, {WS_YA}
    """)
    make_srd(a, SRD4, P_WS, S_OFF, 2048)
    STAT = 32
    PART = 96
    a(f"""
    v_lshlrev_b32 v{V_T2}, 4, v{V_LANE}
    v_mov_b32 v{V_T3}, 0
    s_lshl_b32 s{S_T0}, s{S_WAVE}, 17
    """)
    for k in range(16):
        a(f"buffer_load_dwordx4 {vr(STAT + 4 * k, 4)}, v{V_T3}, {sr(SRD1, 4)}, 0 offen offset:{16 * k} sc1")
    for k in range(4):
        a(f"buffer_load_dwordx4 {vr(PART + 4 * k, 4)}, v{V_T2}, {sr(SRD0, 4)}, s{S_T0} offen sc1")
        if k != 3:
            a(f"s_add_u32 s{S_T0}, s{S_T0}, 32768")
    a("s_waitcnt vmcnt(4)")
    MG, LG = 12, 13
    a(f"v_max_f32 v{MG}, v{STAT}, v{STAT + 2}")
    for k in range(2, 32, 2):
        a(f"v_max3_f32 v{MG}, v{MG}, v{STAT + 2 * k}, v{STAT + 2 * k + 2}")
    for k in range(32):
        a(f"""
        v_sub_f32 v{STAT + 2 * k}, v{STAT + 2 * k}, v{MG}
        v_mul_f32 v{STAT + 2 * k}, s{S_C}, v{STAT + 2 * k}
        v_exp_f32 v{STAT + 2 * k}, v{STAT + 2 * k}
        """)
    a(f"s_nop 0\nv_mul_f32 v{LG}, v{STAT}, v{STAT + 1}")
    for k in range(1, 32):
        a(f"v_fmac_f32 v{LG}, v{STAT + 2 * k}, v{STAT + 2 * k + 1}")
    a(f"v_rcp_f32 v{LG}, v{LG}")
    for g in range(8):
        a(f"s_cmp_eq_u32 s{S_WAVE}, {g}\ns_cselect_b64 vcc, -1, 0")
        for k in range(4):
            if g == 0:
                a(f"v_mov_b32 v{16 + k}, v{STAT + 2 * k}")
            else:
                a(f"v_cndmask_b32 v{16 + k}, v{16 + k}, v{STAT + 2 * (4 * g + k)}, vcc")
    for k in range(4):
        a(f"v_mul_f32 v{16 + k}, v{16 + k}, v{LG}")
    a("s_waitcnt vmcnt(0)")
    for k in range(4):
        for i in range(4):
            a(f"v_lshlrev_b32 v28, 16, v{PART + 4 * k + i}")
            a(f"v_and_b32 v29, 0xffff0000, v{PART + 4 * k + i}")
            if k == 0:
                a(f"v_mul_f32 v{20 + 2 * i}, v16, v28")
                a(f"v_mul_f32 v{21 + 2 * i}, v16, v29")
            else:
                a(f"v_fmac_f32 v{20 + 2 * i}, v{16 + k}, v28")
                a(f"v_fmac_f32 v{21 + 2 * i}, v{16 + k}, v29")
    FR = 32768
    a(f"""
    v_lshlrev_b32 v{V_T0}, 5, v{V_TID}
    ds_write_b128 v{V_T0}, {vr(20, 4)} offset:{FR}
    ds_write_b128 v{V_T0}, {vr(24, 4)} offset:{FR + 16}
    s_waitcnt lgkmcnt(0)
    s_barrier
    v_and_b32 v{V_T1}, 255, v{V_TID}
    v_lshlrev_b32 v{V_T0}, 3, v{V_T1}
    """)
    for g in range(8):
        a(f"ds_read_b64 {vr(32 + 2 * g, 2)}, v{V_T0} offset:{FR + 2048 * g}")
    a("s_waitcnt lgkmcnt(0)")
    for g in range(1, 8):
        a(f"v_add_f32 v32, v32, v{32 + 2 * g}\nv_add_f32 v33, v33, v{33 + 2 * g}")
    a(f"""
    v_cvt_pk_bf16_f32 v16, v32, v33
    v_lshlrev_b32 v{V_T0}, 2, v{V_TID}
    ds_write_b32 v{V_T0}, v16 offset:{L_BF}
    s_waitcnt lgkmcnt(0)
    s_barrier
    """)
    gemv512_xload(a, ('lds', L_BF), 16)
    gemv512_compute(a, F_WUV, 16, 24, 28, None)
    proj_compute(a, L_BF2, True, F_WO, 16, 24, 28, waits=False)
    a(f"""
    v_lshlrev_b32 v{V_T0}, 2, v{V_TID}
    ds_read_b32 v12, v{V_T0} offset:{L_YP}
    ds_read_b32 v13, v{V_T0} offset:{L_YP + 4096}
    s_waitcnt lgkmcnt(0)
    v_add_f32 v12, v12, v13
    buffer_store_dword v12, v{V_T0}, {sr(SRD4, 4)}, 0 offen sc1
    """)


def gen_main(a):
    a.raw(".p2align 8")
    a.label("main_kernel")
    a(f"s_cmp_ge_u32 s2, {NA_WG + NB_WG}\ns_cbranch_scc1 L_main_end")
    load_kernargs(a)
    lane_setup(a)
    make_masks(a)
    perm_consts(a)
    a("s_waitcnt lgkmcnt(0)")
    a(f"s_cmp_lt_u32 s2, {NA_WG}\ns_cbranch_scc1 L_main_A")
    if "noB" in EXP:
        a("s_endpgm")
    gen_B_role(a)
    a.label("L_main_A")
    if "noA" in EXP:
        a("s_endpgm")
    make_srd(a, SRD_DBG, P_DBG, None, 256)
    stamp(a, 0)
    stage_prepA(a)
    stamp(a, 1)
    sync_arrive(a, 0)
    attnA_preload(a)
    sync_wait(a, 0, NA_WG)
    stamp(a, 2)
    stage_attnA(a)
    stamp(a, 3)
    sync_arrive(a, 128)
    lane_setup(a)
    make_masks(a)
    finishA_prefetch(a)
    sync_wait(a, 128, NA_WG)
    stamp(a, 4)
    stage_finishA(a)
    stamp(a, 5)
    dstamp(a, 10)
    a.label("L_main_end")
    a("s_endpgm")


def gen_final(a):
    a.raw(".p2align 8")
    a.label("final_kernel")
    a("s_cmp_ge_u32 s2, 32\ns_cbranch_scc1 L_final_end")
    load_kernargs(a)
    lane_setup(a)
    a("s_waitcnt lgkmcnt(0)")
    a(f"""
    s_and_b32 s{S_Q}, s2, 7
    s_lshr_b32 s{S_B}, s2, 3
    s_and_b32 s{S_B}, s{S_B}, 1
    """)
    make_srd(a, SRD4, P_OUT, None, 4096)
    ACC = 12
    a("s_cmp_ge_u32 s2, 16\ns_cbranch_scc1 L_final_B")
    make_srd_imm(a, SRD0, P_WS, WS_YA, 32 * 4096)
    a(f"""
    s_lshl_b32 s{S_T0}, s{S_B}, 11
    s_lshl_b32 s{S_T1}, s{S_Q}, 8
    s_add_u32 s{S_T0}, s{S_T0}, s{S_T1}
    s_lshl_b32 s{S_T1}, s{S_WAVE}, 14
    s_add_u32 s{S_T0}, s{S_T0}, s{S_T1}
    v_lshlrev_b32 v{V_T0}, 2, v{V_LANE}
    v_add_u32 v{V_T0}, s{S_T0}, v{V_T0}
    s_mov_b32 s{S_T1}, 4096
    s_mov_b32 s{S_T2}, 8192
    s_mov_b32 s{S_T3}, 12288
    buffer_load_dword v16, v{V_T0}, {sr(SRD0, 4)}, 0 offen
    buffer_load_dword v17, v{V_T0}, {sr(SRD0, 4)}, s{S_T1} offen
    buffer_load_dword v18, v{V_T0}, {sr(SRD0, 4)}, s{S_T2} offen
    buffer_load_dword v19, v{V_T0}, {sr(SRD0, 4)}, s{S_T3} offen
    s_waitcnt vmcnt(0)
    v_add_f32 v16, v16, v17
    v_add_f32 v18, v18, v19
    v_add_f32 v{ACC}, v16, v18
    s_mov_b32 s{S_T5}, 0
    s_branch L_final_red
    """)
    a.label("L_final_B")
    make_srd_imm(a, SRD0, P_WS, WS_YB, 2 * 32 * 4 * 2048)
    make_srd_imm(a, SRD1, P_WS, WS_BSTAT, 2 * 32 * 32)
    a(f"""
    s_lshl_b32 s{S_T0}, s{S_B}, 5
    s_lshl_b32 s{S_T1}, s{S_WAVE}, 2
    s_add_u32 s{S_T0}, s{S_T0}, s{S_T1}
    s_lshl_b32 s{S_T1}, s{S_T0}, 13
    s_lshl_b32 s{S_T2}, s{S_Q}, 8
    s_add_u32 s{S_T1}, s{S_T1}, s{S_T2}
    v_lshlrev_b32 v{V_T0}, 2, v{V_LANE}
    v_add_u32 v{V_T0}, s{S_T1}, v{V_T0}
    s_lshl_b32 s{S_T1}, s{S_T0}, 5
    v_mov_b32 v{V_T1}, s{S_T1}
    """)
    ST = 32
    Y = 64
    for k in range(4):
        a(f"buffer_load_dwordx4 {vr(ST + 8 * k, 4)}, v{V_T1}, {sr(SRD1, 4)}, 0 offen offset:{32 * k}")
        a(f"buffer_load_dwordx4 {vr(ST + 8 * k + 4, 4)}, v{V_T1}, {sr(SRD1, 4)}, 0 offen offset:{32 * k + 16}")
    a(f"s_mov_b32 s{S_T1}, 0")
    for k in range(4):
        for s in range(3):
            a(f"buffer_load_dword v{Y + 4 * k + s}, v{V_T0}, {sr(SRD0, 4)}, s{S_T1} offen")
            if not (k == 3 and s == 2):
                a(f"s_add_u32 s{S_T1}, s{S_T1}, {2048 if s != 2 else 4096}")
    a(f"s_waitcnt vmcnt(0)\nv_mov_b32 v{ACC}, 0")
    for k in range(4):
        b = ST + 8 * k
        a(f"""
        v_max3_f32 v16, v{b}, v{b + 2}, v{b + 4}
        """)
        for s in range(3):
            a(f"""
            v_sub_f32 v{b + 2 * s}, v{b + 2 * s}, v16
            v_mul_f32 v{b + 2 * s}, s{S_C}, v{b + 2 * s}
            v_exp_f32 v{b + 2 * s}, v{b + 2 * s}
            """)
        a(f"s_nop 0\nv_mul_f32 v17, v{b}, v{b + 1}\nv_mul_f32 v18, v{b}, v{Y + 4 * k}")
        for s in range(1, 3):
            a(f"v_fmac_f32 v17, v{b + 2 * s}, v{b + 2 * s + 1}\nv_fmac_f32 v18, v{b + 2 * s}, v{Y + 4 * k + s}")
        a(f"v_rcp_f32 v17, v17\ns_nop 0\nv_fmac_f32 v{ACC}, v18, v17")
    a(f"s_mov_b32 s{S_T5}, 1024")
    a.label("L_final_red")
    a(f"""
    v_lshlrev_b32 v{V_T0}, 2, v{V_TID}
    ds_write_b32 v{V_T0}, v{ACC}
    s_waitcnt lgkmcnt(0)
    s_barrier
    s_cmp_lg_u32 s{S_WAVE}, 0
    s_cbranch_scc1 L_final_end
    """)
    for w in range(8):
        a(f"ds_read_b32 v{16 + w}, v{V_T0} offset:{256 * w}")
    a("s_waitcnt lgkmcnt(0)")
    for w in range(1, 8):
        a(f"v_add_f32 v16, v16, v{16 + w}")
    a(f"""
    v_cvt_pk_bf16_f32 v16, v16, v16
    s_lshl_b32 s{S_T0}, s{S_B}, 11
    s_lshl_b32 s{S_T1}, s{S_Q}, 7
    s_add_u32 s{S_T0}, s{S_T0}, s{S_T1}
    s_add_u32 s{S_T0}, s{S_T0}, s{S_T5}
    v_lshlrev_b32 v{V_T0}, 1, v{V_LANE}
    buffer_store_short v16, v{V_T0}, {sr(SRD4, 4)}, s{S_T0} offen
    """)
    a.label("L_final_end")
    a("s_endpgm")


def descriptor(name, vgpr):
    return f"""
.amdhsa_kernel {name}
  .amdhsa_next_free_vgpr {vgpr}
  .amdhsa_next_free_sgpr 100
  .amdhsa_accum_offset {(vgpr + 3) // 4 * 4}
  .amdhsa_group_segment_fixed_size 0
  .amdhsa_kernarg_size 112
  .amdhsa_user_sgpr_count 2
  .amdhsa_user_sgpr_kernarg_segment_ptr 1
  .amdhsa_system_sgpr_workgroup_id_x 1
.end_amdhsa_kernel
"""


def main():
    a = Asm()
    gen_main(a)
    gen_final(a)
    launches = [
        ("main_kernel", NA_WG + NB_WG, LA_END),
        ("final_kernel", 32, 2048),
    ]
    txt = HEADER
    for k, g, lds in launches:
        txt += f"; @launch kernel={k} grid=({g},1,1) block=(512,1,1) lds={lds}\n"
    txt += '.amdgcn_target "amdgcn-amd-amdhsa--gfx950"\n.text\n'
    for k, _, _ in launches:
        txt += f".globl {k}\n.type {k},@function\n"
    txt += a.text()
    txt += '.section .rodata,"a"\n.p2align 6\n'
    for k, _, _ in launches:
        txt += ".p2align 6\n" + descriptor(k, NVGPR if k == 'main_kernel' else 128)
    open(OUT, "w").write(txt)
    print("wrote", OUT, len(txt))


if __name__ == "__main__":
    main()
```
